```python
import torch

def _softmax(x, axis=-1):
    return torch.softmax(x, dim=axis)
def _gelu(x):
    return torch.nn.functional.gelu(x, approximate="tanh")
def _silu(x):
    return torch.nn.functional.silu(x)
def _sigmoid(x):
    return torch.sigmoid(x)
def _layernorm(x, axis=-1, eps=1e-5):
    m = x.mean(dim=axis, keepdim=True)
    v = x.var(dim=axis, keepdim=True, unbiased=False)
    return (x - m) / torch.sqrt(v + eps)
def _scatter_add(tgt, idx, src, axis=0):
    return tgt.clone().index_add_(axis, idx, src)
def _segment_sum(src, seg, n):
    out = torch.zeros((n,) + src.shape[1:], dtype=src.dtype)
    return out.index_add_(0, seg, src)
def _pad(x, pw):
    flat = tuple(v for pair in reversed(pw) for v in pair)
    return torch.nn.functional.pad(x, flat)

kernel_name = 'interleave_layers__sliding_block_cached__glu_gated_swiglu__decode'

def setup_inputs():

    _w = (lambda a: (lambda t: t.to(torch.bfloat16) if t.is_floating_point() else t)(torch.as_tensor(a)))
    def _A_setup():
        B, Sq, D = 1, 1, 512
        Hq, Hkv, Sk, Dh = 32, 8, 32768, 128
        assert Hq % Hkv == 0, (Hq, Hkv)
        return {
            "x": _w((lambda *s: torch.randn(*s, dtype=torch.bfloat16) * 0.05)(B, Sq, D)),
            "k_cache": _w((lambda *s: torch.randn(*s, dtype=torch.bfloat16) * 0.8)(B, Hkv, Sk, Dh)),
            "v_cache": _w((lambda *s: torch.randn(*s, dtype=torch.bfloat16) * 0.8)(B, Hkv, Sk, Dh)),
            "wq": _w((lambda *s: torch.randn(*s, dtype=torch.bfloat16) * 0.8)(D, Hq * Dh) * (D ** -0.5)),
            "wo": _w((lambda *s: torch.randn(*s, dtype=torch.bfloat16) * 0.8)(Hq * Dh, D) * ((Hq * Dh) ** -0.5)),
        }
    _A_in = _A_setup()

    def _B_setup():
        B, S, D, F = 1, 1, 512, 1792
        return {
            "x": _w((lambda *s: torch.randn(*s, dtype=torch.bfloat16) * 0.05)(B, S, D)),
            "w1": _w((lambda *s: torch.randn(*s, dtype=torch.bfloat16) * 0.2)(D, F) * (2.0 / D) ** 0.5),
            "w3": _w((lambda *s: torch.randn(*s, dtype=torch.bfloat16) * 0.2)(D, F) * (2.0 / D) ** 0.5),
            "w2": _w((lambda *s: torch.randn(*s, dtype=torch.bfloat16) * 0.2)(F, D) * (2.0 / F) ** 0.5),
        }
    _B_in = _B_setup()

    return {
        "A_x": _A_in["x"],
        "A_k_cache": _A_in["k_cache"],
        "A_v_cache": _A_in["v_cache"],
        "A_wq": _A_in["wq"],
        "A_wo": _A_in["wo"],
        "B_x": _B_in["x"],
        "B_w1": _B_in["w1"],
        "B_w3": _B_in["w3"],
        "B_w2": _B_in["w2"],
    }

def reference(A_x, A_k_cache, A_v_cache, A_wq, A_wo, B_x, B_w1, B_w3, B_w2):
    def _A_ref(x, k_cache, v_cache, wq, wo):
        B, Sq, D = x.shape
        Hq, Dh = 32, 128
        Hkv, Sk = k_cache.shape[1], k_cache.shape[2]
        W = min(4096, max(256, Sk // 4))
        rep = Hq // Hkv
        q = (lambda x, *d: x.permute(*d))((x @ wq).reshape(B, Sq, Hq, Dh), 0, 2, 1, 3)
        k = (lambda x, n, axis: torch.repeat_interleave(x, n, dim=axis))(k_cache[:, :, Sk - W:, :], rep, axis=1)
        v = (lambda x, n, axis: torch.repeat_interleave(x, n, dim=axis))(v_cache[:, :, Sk - W:, :], rep, axis=1)
        scores = torch.einsum("bhqd,bhkd->bhqk", q, k) * (Dh ** -0.5)
        p = _softmax(scores, axis=-1)
        o = torch.einsum("bhqk,bhkd->bhqd", p, v)
        return (lambda x, *d: x.permute(*d))(o, 0, 2, 1, 3).reshape(B, Sq, Hq * Dh) @ wo

    def _B_ref(x, w1, w3, w2):
        gate = torch.einsum("bsd,df->bsf", x, w1)
        up = torch.einsum("bsd,df->bsf", x, w3)
        h = _silu(gate) * up
        out = torch.einsum("bsf,fd->bsd", h, w2)
        return out

    x = A_x
    x = x + _A_ref(_layernorm(x, axis=-1), A_k_cache, A_v_cache, A_wq, A_wo)
    x = x + _B_ref(_layernorm(x, axis=-1), B_w1, B_w3, B_w2)
    x = x + _A_ref(_layernorm(x, axis=-1), A_k_cache, A_v_cache, A_wq, A_wo)
    x = x + _B_ref(_layernorm(x, axis=-1), B_w1, B_w3, B_w2)
    return x
```

```python
import re, sys

REG_RE = re.compile(r'^(-|\|)?(?:abs\()?([vas])(\d+)\)?\|?$')
RANGE_RE = re.compile(r'^(-)?([vas])\[(\d+):(\d+)\]$')

def regs_of(tok):
    tok = tok.strip()
    tok = tok.replace('neg(', '').replace('abs(', '').replace(')', '').replace('|', '')
    if tok.startswith('-'): tok = tok[1:]
    m = re.match(r'^([vas])(\d+)$', tok)
    if m: return {(m.group(1), int(m.group(2)))}
    m = re.match(r'^([vas])\[(\d+):(\d+)\]$', tok)
    if m: return {(m.group(1), i) for i in range(int(m.group(2)), int(m.group(3)) + 1)}
    if tok == 'vcc': return {('s', 106), ('s', 107)}
    if tok == 'vcc_lo': return {('s', 106)}
    if tok == 'vcc_hi': return {('s', 107)}
    if tok == 'exec': return {('s', 126), ('s', 127)}
    if tok == 'exec_lo': return {('s', 126)}
    if tok == 'exec_hi': return {('s', 127)}
    if tok == 'm0': return {('s', 124)}
    return set()

TRANS = ('v_exp_f32', 'v_log_f32', 'v_rcp_f32', 'v_rsq_f32', 'v_sqrt_f32', 'v_sin_f32', 'v_cos_f32', 'v_rcp_iflag_f32',
         'v_exp_f16', 'v_log_f16', 'v_rcp_f16', 'v_rsq_f16', 'v_sqrt_f16')
NO_DST_S = ('s_cmp', 's_waitcnt', 's_barrier', 's_branch', 's_cbranch', 's_nop', 's_setprio', 's_sleep', 's_endpgm',
            's_bitcmp', 's_setpc', 's_sendmsg', 's_setreg', 's_cmpk')

def mfma_passes(mn):
    if not mn.startswith('v_mfma'): return None
    if '32x32x16' in mn or '32x32x8' in mn: return (8, 'xdl')
    if '16x16x32' in mn or '16x16x16' in mn: return (4, 'xdl')
    if '4x4x4' in mn: return (2, 'xdl')
    if mn.startswith('v_mfma_f32_16x16x4_f32'): return (8, 'sgemm')
    if mn.startswith('v_mfma_f32_32x32x2_f32'): return (16, 'sgemm')
    if mn.startswith('v_mfma_f32_4x4x1'): return (2, 'sgemm')
    if mn.startswith('v_mfma_f32_16x16x1'): return (8, 'sgemm')
    if mn.startswith('v_mfma_f32_32x32x1'): return (16, 'sgemm')
    raise ValueError('unknown mfma ' + mn)

class Ins:
    __slots__ = ('text', 'mn', 'ops', 'defs', 'uses', 'kind', 'label', 'target', 'mods', 'srcA', 'srcB', 'srcC', 'passes',
                 'cls', 'dpp', 'ws', 'vmdst', 'isload', 'isstore', 'storedata', 'lds_dma', 'waitvm', 'waitlgkm', 'line', 'smem', 'widestore')
    def __init__(self, text):
        self.text = text; self.label = None; self.target = None
        self.defs = set(); self.uses = set(); self.kind = 'other'; self.dpp = False; self.ws = 1
        self.passes = None; self.cls = None; self.srcA = self.srcB = self.srcC = set()
        self.vmdst = set(); self.isload = False; self.isstore = False; self.storedata = set(); self.lds_dma = False
        self.waitvm = None; self.waitlgkm = None; self.smem = False; self.widestore = False
        t = text.split(';')[0].split('//')[0].strip()
        if t.endswith(':'):
            self.kind = 'label'; self.label = t[:-1]; self.ws = 0; self.mn = ''; self.ops = []; return
        if not t or t.startswith('.'):
            self.kind = 'dir'; self.ws = 0; self.mn = ''; self.ops = []; return
        parts = t.split(None, 1)
        mn = parts[0]; self.mn = mn
        rest = parts[1] if len(parts) > 1 else ''
        ops = []; depth = 0; cur = ''
        for ch in rest:
            if ch in '[(': depth += 1
            if ch in '])': depth -= 1
            if ch == ',' and depth == 0: ops.append(cur.strip()); cur = ''
            else: cur += ch
        if cur.strip(): ops.append(cur.strip())
        mods = ''
        if ops:
            last = ops[-1].split(None, 1)
            if len(last) > 1 and not mn.startswith('s_waitcnt'):
                ops[-1] = last[0]; mods = last[1]
        self.ops = ops; self.mods = mods
        R = [regs_of(o) for o in ops]
        EXEC = {('s', 126), ('s', 127)}; VCC = {('s', 106), ('s', 107)}
        allr = lambda l: set().union(*l) if l else set()
        base = re.sub(r'_(e32|e64|dpp|sdwa)$', '', mn)
        if mn.startswith('v_'):
            self.kind = 'valu'
            self.uses |= EXEC
            if mn.startswith('v_mfma'):
                self.kind = 'mfma'; self.passes, self.cls = mfma_passes(mn)
                self.defs = R[0]; self.srcA, self.srcB, self.srcC = R[1], R[2], R[3]
                self.uses |= R[1] | R[2] | R[3]
            elif base.startswith('v_cmp'):
                self.defs = R[0]; self.uses |= allr(R[1:])
                if base.startswith('v_cmpx'): self.defs |= EXEC
            elif base.startswith(('v_readfirstlane', 'v_readlane')):
                self.defs = R[0]; self.uses |= allr(R[1:])
            elif base.startswith('v_writelane'):
                self.defs = R[0]; self.uses |= allr(R)
            elif base.startswith(('v_permlane16_swap', 'v_permlane32_swap', 'v_swap')):
                self.defs = R[0] | R[1]; self.uses |= R[0] | R[1]
            elif base.startswith(('v_add_co', 'v_sub_co', 'v_subrev_co', 'v_addc_co', 'v_subb_co', 'v_div_scale', 'v_mad_u64_u32')):
                self.defs = R[0] | R[1]; self.uses |= allr(R[2:])
            else:
                self.defs = R[0]; self.uses |= allr(R[1:])
                if base.startswith(('v_fmac', 'v_dot2c', 'v_pk_fmac', 'v_accvgpr_NONE')): self.uses |= R[0]
                if base.startswith('v_cndmask') and len(ops) == 3: self.uses |= VCC
                if base.startswith('v_div_fmas'): self.uses |= VCC
            if any(k in mods for k in ('quad_perm', 'row_', 'wave_')) or mn.endswith('_dpp'):
                self.dpp = True; self.uses |= R[0]
        elif mn.startswith(('buffer_', 'global_', 'flat_')):
            self.kind = 'vmem'; self.uses |= EXEC
            if mn.startswith(('buffer_wbl2', 'buffer_inv')):
                pass
            elif mn.startswith('buffer_'):
                lds = re.search(r'\blds\b', mods) is not None
                if 'load' in mn:
                    self.isload = True
                    if lds:
                        self.lds_dma = True; self.uses |= allr(R) | {('s', 124)}
                    else:
                        self.vmdst = R[0]; self.defs = R[0]; self.uses |= allr(R[1:])
                elif 'store' in mn:
                    self.isstore = True; self.storedata = R[0]; self.uses |= allr(R)
                    self.widestore = 'x3' in mn or 'x4' in mn
                elif 'atomic' in mn:
                    self.uses |= allr(R)
                    if 'sc0' in mods: self.vmdst = R[0]; self.defs = R[0]; self.isload = True
                    else: self.isstore = True
            else:
                if 'load_lds' in mn:
                    self.isload = True; self.lds_dma = True; self.uses |= allr(R) | {('s', 124)}
                elif 'load' in mn:
                    self.isload = True; self.vmdst = R[0]; self.defs = R[0]; self.uses |= allr(R[1:])
                elif 'store' in mn:
                    self.isstore = True; self.storedata = R[1]; self.uses |= allr(R)
                    self.widestore = 'x3' in mn or 'x4' in mn
                elif 'atomic' in mn:
                    if 'sc0' in mods:
                        self.isload = True; self.vmdst = R[0]; self.defs = R[0]; self.uses |= allr(R[1:])
                    else:
                        self.isstore = True; self.uses |= allr(R)
        elif mn.startswith('ds_'):
            self.kind = 'ds'; self.uses |= EXEC
            if mn.startswith(('ds_read', 'ds_bpermute', 'ds_permute', 'ds_swizzle')) or '_rtn' in mn:
                self.isload = True; self.vmdst = R[0]; self.defs = R[0]; self.uses |= allr(R[1:])
            else:
                self.isstore = True; self.uses |= allr(R); self.storedata = allr(R[1:])
        elif mn.startswith('s_'):
            self.kind = 'salu'
            if mn == 's_nop': self.ws = int(ops[0], 0) + 1
            elif mn == 's_waitcnt':
                m = re.search(r'vmcnt\((\d+)\)', t); self.waitvm = int(m.group(1)) if m else None
                m = re.search(r'lgkmcnt\((\d+)\)', t); self.waitlgkm = int(m.group(1)) if m else None
            elif mn.startswith(('s_branch', 's_cbranch')):
                self.target = ops[0]
                if 'vcc' in mn: self.uses |= VCC
                if 'exec' in mn: self.uses |= EXEC
            elif mn.startswith(('s_load', 's_memtime', 's_memrealtime', 's_buffer_load')):
                self.smem = True; self.defs = R[0]; self.uses |= allr(R[1:]); self.vmdst = R[0]
            elif mn.startswith(NO_DST_S):
                self.uses |= allr(R)
            else:
                self.defs = R[0]; self.uses |= allr(R[1:])
                if 'saveexec' in mn: self.defs |= EXEC; self.uses |= EXEC
                if mn.startswith(('s_addk', 's_mulk', 's_cmov')): self.uses |= R[0]
        else:
            raise ValueError('cannot parse: ' + text)

def isv(r): return r[0] in 'va'

class Asm:
    def __init__(self):
        self.lines = []
    def __call__(self, text):
        for l in text.split('\n'):
            l = l.strip()
            if l: self.lines.append(l)
    def extend(self, other): self.lines += other.lines

    def _need(self, P, C):
        n = 0
        pv = P.kind == 'valu'
        if pv:
            sdef = {r for r in P.defs if r[0] == 's'}
            vdef = {r for r in P.defs if isv(r)}
            if sdef:
                if C.kind == 'vmem' and sdef & C.uses: n = max(n, 5)
                if C.kind in ('valu', 'mfma') and sdef & C.uses:
                    n = max(n, 4 if C.mn.startswith(('v_readlane', 'v_writelane', 'v_div_fmas')) else 2)
                    if (sdef & {('s', 126), ('s', 127)}):
                        n = max(n, 5 if C.dpp else 4)
            if vdef & C.uses:
                if C.kind == 'valu':
                    if C.dpp: n = max(n, 2)
                    if C.mn.startswith(('v_readlane', 'v_readfirstlane')): n = max(n, 1)
                    if C.mn.startswith('v_permlane'): n = max(n, 2)
                    if P.mn.startswith(TRANS): n = max(n, 1)
                    if 'op_sel' in P.mods or 'dst_sel' in P.mods: n = max(n, 1)
                if C.kind == 'mfma': n = max(n, 2)
            if P.mn.startswith('v_dot'):
                if vdef & (C.uses | C.defs) and C.kind in ('valu', 'mfma', 'vmem', 'ds'):
                    if C.mn == P.mn:
                        ab = set().union(*[regs_of(o) for o in C.ops[1:3]])
                        if vdef & ab: n = max(n, 3)
                    else: n = max(n, 3)
        if P.kind == 'mfma':
            p = P.passes; xdl = P.cls == 'xdl'
            idx = {2: 0, 4: 1, 8: 2, 16: 3}[p]
            D = P.defs
            if C.kind == 'mfma':
                if D & C.srcC:
                    if D == C.srcC and C.passes == p and C.cls == P.cls: n = max(n, [2, 0, 0, 0][idx])
                    elif xdl: n = max(n, [4, 6, 10, 18][idx] if C.cls == 'xdl' else [3, 6, 10, 18][idx])
                    else: n = max(n, [2, 4, 8, 16][idx] if C.cls == 'sgemm' else 0)
                if D & (C.srcA | C.srcB): n = max(n, [5, 8, 12, 20][idx] if xdl else [4, 6, 10, 18][idx])
                if D & C.defs and not (D & C.srcC): n = max(n, [5, 8, 12, 20][idx])
            elif C.kind in ('valu', 'vmem', 'ds'):
                if D & (C.uses | C.defs): n = max(n, [5, 8, 12, 20][idx] if xdl else [4, 6, 10, 18][idx])
            if C.kind == 'valu' and xdl and (P.srcC & C.defs): n = max(n, [1, 3, 7, 15][idx])
        if P.kind == 'vmem' and P.widestore and (P.storedata & C.defs):
            n = max(n, 2 if C.kind in ('valu', 'mfma') else 1)
        if P.kind == 'salu' and ('s', 124) in P.defs and (C.lds_dma or C.mn.startswith('s_movrel') or 'addtid' in C.mn): n = max(n, 1)
        return n

    def finalize(self, check_waits=True, verbose=False):
        ins = [Ins(l) for l in self.lines]
        MAXW = 20
        changed = True; inserted = 0
        while changed:
            changed = False
            labels = {i.label: k for k, i in enumerate(ins) if i.kind == 'label'}
            preds = [[] for _ in ins]
            for k, i in enumerate(ins):
                if i.target is not None:
                    if i.target not in labels: raise ValueError('missing label ' + i.target)
                    preds[labels[i.target]].append(k)
                if k + 1 < len(ins) and i.mn not in ('s_branch', 's_endpgm'):
                    preds[k + 1].append(k)
            for k, C in enumerate(ins):
                if C.kind in ('label', 'dir'): continue
                worst = 0
                stack = [(p, 0) for p in preds[k]]; seen = {}
                while stack:
                    p, d = stack.pop()
                    if d >= MAXW: continue
                    if seen.get(p, 99) <= d: continue
                    seen[p] = d
                    P = ins[p]
                    if P.kind not in ('label', 'dir'):
                        need = self._need(P, C)
                        if need > d: worst = max(worst, need - d)
                    for q in preds[p]: stack.append((q, d + P.ws))
                if worst > 0:
                    nop = Ins('s_nop %d' % (worst - 1))
                    ins.insert(k, nop); inserted += 1; changed = True
                    if verbose: print('nop %d before %s' % (worst, C.text), file=sys.stderr)
                    break
        self.ins = ins; self.inserted = inserted
        if check_waits: self.check_waits()
        return '\n'.join(('' if i.kind == 'label' else '    ') + i.text for i in ins)

    def check_waits(self):
        ins = self.ins
        labels = {i.label: k for k, i in enumerate(ins) if i.kind == 'label'}
        errs = {}
        seen = set()
        stack = [(0, (), ())]
        steps = 0
        while stack:
            pc, vm, lg = stack.pop()
            while pc < len(ins):
                key = (pc, vm, lg)
                I = ins[pc]
                if I.kind == 'label':
                    if key in seen: break
                    seen.add(key)
                steps += 1
                if steps > 3000000: raise RuntimeError('wait checker: too many steps')
                if I.kind in ('label', 'dir'): pc += 1; continue
                touched = (I.uses | I.defs)
                pend = set()
                for d in vm: pend |= d
                for d, _ in lg: pend |= d
                bad = touched & pend
                if bad:
                    if I.isload and not (I.uses & pend) and I.kind == 'vmem' and all(not (bad & d) for d, _ in lg):
                        pass
                    elif I.isload and not (I.uses & pend) and I.kind == 'ds' and all(not (bad & d) for d in vm):
                        pass
                    else:
                        errs[pc] = 'line %d: %s touches in-flight regs %s' % (pc, I.text, sorted(bad)[:6])
                if I.waitvm is not None and len(vm) > I.waitvm: vm = vm[len(vm) - I.waitvm:]
                if I.waitlgkm is not None:
                    if I.waitlgkm == 0: lg = ()
                    elif not any(s for _, s in lg) and len(lg) > I.waitlgkm: lg = lg[len(lg) - I.waitlgkm:]
                if I.kind == 'vmem':
                    vm = vm + (frozenset(I.vmdst),)
                    if len(vm) > 63: vm = vm
                    if len(vm) > 200: vm = vm[-200:]
                if I.kind == 'ds': lg = lg + ((frozenset(I.vmdst), False),)
                if I.smem: lg = lg + ((frozenset(I.vmdst), True),)
                if I.mn == 's_endpgm': break
                if I.target is not None:
                    stack.append((labels[I.target], vm, lg))
                    if I.mn == 's_branch': break
                pc += 1
        if errs:
            for k in sorted(errs): print('WAITCHECK', errs[k], file=sys.stderr)
            raise RuntimeError('wait check failed')
```

```python
import sys, os, argparse
sys.path.insert(0, os.path.dirname(os.path.abspath(__file__)))
from asmgen import Asm

NAME = 'interleave_layers__sliding_block_cached__glu_gated_swiglu__decode'

OFF_Q = 0x00000; OFF_O = 0x04000; OFF_X1 = 0x08000; OFF_GU = 0x0C000; OFF_X2 = 0x10000; OFF_ML = 0x14000
OFF_RS = 0x18000; OFF_C1 = 0x98000; OFF_C2 = 0xD8000; CLR0 = 0x2000; CLR_PER_CU = 5 * 1024
OFF_DIAG = 0x200000
V_L = 0; K_L = 32768; W_L = 65536; W2_L = 98304; DUM_L = 112640
RED_A = 113664; RED_B = 114176; RED_C = 114688; MX = 115200; PX = 115456; LX = 116480; HX = 116736
LDS_SIZE = 117760
G, J, W, R = 's4', 's5', 's6', 's7'
sX, sK, sV, sWQ, sWO, sW1, sW3, sW2, sOUT, sDBG, sWS, sWF = [f's[{40+4*k}:{43+4*k}]' for k in range(12)]
def srd_lo(k): return 40 + 4 * k
FAST, PASS, CNT = 's16', 's17', 's18'
T0, T1, T2, T3, T4 = 's19', 's20', 's21', 's22', 's23'
MGRP = 's[24:25]'
oQ, oRS, oML, oO, oC1, oX1, oGU, oC2, oX2 = 's26', 's27', 's28', 's29', 's30', 's31', 's32', 's33', 's34'
CEXP = 's35'; T5, T6, T7 = 's36', 's37', 's38'; OWN4 = 's39'
MASK4 = 's[8:9]'
SAVE = 's[10:11]'
L = 'v1'
vXF, vQ, vRSp, vRSg, vMLg, vOp, vCp, vCg, vXp, vPub, vRedW, vRedR, vPW, vPR = [f'v{k}' for k in range(2, 16)]
KF = 16; VF = 48; WA = 80; WB = 112; CS = 144
vMW, vMR, vLW, vLR, vGU, vHW, vHR, vMLp, vRES, vRedR4, vST = [f'v{k}' for k in range(146, 157)]
XF = 160; QB = 164; ACC = 180
def v(a, n=1): return f'v{a}' if n == 1 else f'v[{a}:{a+n-1}]'
MAXPOLL = 60000

class K:
    def __init__(self, opt):
        self.o = opt; self.a = Asm(); self.nlab = 0; self.nstamp = 0; self.stamp_names = []
        self.ld = 'nt' if opt.nt else ''
    def __call__(self, t): self.a(t)
    def lab(self, base):
        self.nlab += 1; return f'L_{base}_{self.nlab}'
    def stamp(self, name):
        if not self.o.stamps: return
        A = self; k = self.stamp_names.index(name) if name in self.stamp_names else None
        if k is None: self.stamp_names.append(name); k = len(self.stamp_names) - 1
        A('s_memrealtime s[88:89]'); A('s_waitcnt lgkmcnt(0)')
        A(f's_lshl_b32 s90, {PASS}, 5'); A(f's_add_u32 s90, s90, {k}'); A('s_mov_b32 m0, s90')
        A(f'v_writelane_b32 {vST}, s88, m0')
    def flush_stamps(self):
        if not self.o.stamps: return
        A = self
        A('s_mov_b64 exec, -1')
        A(f's_lshl_b32 s90, s2, 2'); A(f's_add_u32 s90, s90, {W}'); A('s_lshl_b32 s90, s90, 8'); A(f's_add_u32 s90, s90, {OFF_DIAG}')
        A(f'v_lshlrev_b32 v255, 2, {L}')
        A(f'buffer_store_dword {vST}, v255, {sWS}, s90 offen')
    def end(self):
        self.flush_stamps(); self('s_endpgm')

    def poll(self, loads, check, name, pre_wait=None, wait='vmcnt(0)'):
        A = self; lp = self.lab('poll_' + name)
        A(f's_mov_b32 {CNT}, 0')
        A(f'{lp}:')
        for t in loads: A(t)
        A(f's_add_u32 {CNT}, {CNT}, 1'); A(f's_cmp_gt_u32 {CNT}, {MAXPOLL}'); A('s_cbranch_scc1 L_bail')
        A(f's_waitcnt {wait}')
        check()
        A(f's_cbranch_vccnz {lp}')
    def chk_regs(self, regs, tmp):
        A = self; regs = list(regs)
        if len(regs) == 1:
            A(f'v_cmp_eq_u32 vcc, -1, v{regs[0]}'); return
        if len(regs) == 2:
            A(f'v_max_u32 v{tmp}, v{regs[0]}, v{regs[1]}'); rest = []
        else:
            A(f'v_max3_u32 v{tmp}, v{regs[0]}, v{regs[1]}, v{regs[2]}'); rest = regs[3:]
        while rest:
            if len(rest) >= 2: A(f'v_max3_u32 v{tmp}, v{tmp}, v{rest[0]}, v{rest[1]}'); rest = rest[2:]
            else: A(f'v_max_u32 v{tmp}, v{tmp}, v{rest[0]}'); rest = []
        A(f'v_cmp_eq_u32 vcc, -1, v{tmp}')
    def pub(self, text):
        A = self; ls = self.lab('slow'); ld = self.lab('pubd')
        A(f's_cmp_eq_u32 {FAST}, 0'); A(f's_cbranch_scc1 {ls}')
        A(text); A(f's_branch {ld}')
        A(f'{ls}:'); A(text + ' sc1'); A(f'{ld}:')

    def swap_red(self, op, r, t, which):
        A = self
        A(f'v_mov_b32 v{t}, v{r}'); A(f'v_permlane{which}_swap_b32 v{r}, v{t}'); A(f'{op} v{r}, v{r}, v{t}')
    def dpp(self, op, r, ror):
        self(f'{op}_dpp v{r}, v{r}, v{r} row_ror:{ror} row_mask:0xf bank_mask:0xf')

    def interleave(self, mf, va, per=3):
        va = list(va)
        for m in mf:
            self(m)
            for _ in range(per):
                if va: self(va.pop(0))
        for x in va: self(x)

    def gemv_core(self, WR, red, a=XF, stats=False):
        A = self
        D = lambda T, t: ACC + 16 * T + 4 * t
        mf = [f'v_mfma_f32_16x16x32_bf16 {v(D(T,t),4)}, {v(a,4)}, {v(WR+8*t+4*T,4)}, 0' for t in range(4) for T in range(2)]
        va = []
        S1, S2, TT = 212, 213, 214
        if stats:
            va.append(f'v_dot2_f32_bf16 v{S1}, v{a}, v221, 0'); va.append(f'v_dot2_f32_bf16 v{S2}, v{a}, v{a}, 0')
            for k in range(1, 4):
                va.append(f'v_dot2_f32_bf16 v{S1}, v{a+k}, v221, v{S1}'); va.append(f'v_dot2_f32_bf16 v{S2}, v{a+k}, v{a+k}, v{S2}')
            va += [f'v_permlane32_swap_b32 v{S1}, v{S2}', f'v_add_f32 v{S1}, v{S1}, v{S2}',
                   f'v_mov_b32 v{TT}, v{S1}', f'v_permlane16_swap_b32 v{S1}, v{TT}', f'v_add_f32 v{S1}, v{S1}, v{TT}']
            for ror in (8, 4, 2, 1): va.append(f'v_add_f32_dpp v{S1}, v{S1}, v{S1} row_ror:{ror} row_mask:0xf bank_mask:0xf')
            va += [f'v_mov_b32 v{S2}, v{S1}', f'v_permlane32_swap_b32 v{S1}, v{S2}',
                   f'v_mul_f32 v{S1}, 0x3b000000, v{S1}', f'v_mul_f32 v{S2}, 0x3b000000, v{S2}',
                   f'v_fma_f32 v{S2}, -v{S1}, v{S1}, v{S2}', f'v_max_f32 v{S2}, 0, v{S2}', f'v_add_f32 v{S2}, 0x3727c5ac, v{S2}',
                   f'v_rsq_f32 v{S2}, v{S2}']
            A('v_mov_b32 v221, 0x3f803f80')
        self.interleave(mf, va, per=3)
        P0, P1 = 216, 217
        for T, P in ((0, P0), (1, P1)):
            A(f'v_add_f32 v{P}, v{D(T,0)}, v{D(T,1)+1}'); A(f'v_add_f32 v{P+2}, v{D(T,2)+2}, v{D(T,3)+3}')
        for P in (P0, P1): A(f'v_add_f32 v{P}, v{P}, v{P+2}')
        if red != RED_A: A(f'v_add_u32 v215, {red-RED_A}, {vRedW}')
        A(f's_mov_b64 exec, {MGRP}')
        A(f'ds_write2_b32 {vRedW if red == RED_A else "v215"}, v{P0}, v{P1} offset0:0 offset1:16')
        A('s_mov_b64 exec, -1')

    def ln_finalize_publish(self, soff, pass0_cs):
        A = self
        for w in range(4): A(f'ds_read_b64 {v(224+2*w,2)}, {vRedR} offset:{w*128}')
        if pass0_cs:
            lc = self.lab('nocs')
            A(f's_cmp_lg_u32 {PASS}, 0'); A(f's_cbranch_scc1 {lc}')
            for w in range(4): A(f'ds_read_b64 {v(232+2*w,2)}, {vRedR} offset:{RED_C-RED_A+w*128}')
            A('s_waitcnt lgkmcnt(0)')
            for e in range(2):
                A(f'v_add_f32 v{232+e}, v{232+e}, v{234+e}'); A(f'v_add_f32 v{236+e}, v{236+e}, v{238+e}')
                A(f'v_add_f32 v{CS+e}, v{232+e}, v{236+e}')
            A(f'{lc}:')
        A('s_waitcnt lgkmcnt(0)')
        for e in range(2):
            A(f'v_add_f32 v{224+e}, v{224+e}, v{226+e}'); A(f'v_add_f32 v{228+e}, v{228+e}, v{230+e}')
        for e in range(2): A(f'v_add_f32 v{224+e}, v{224+e}, v{228+e}')
        for e in range(2): A(f'v_fma_f32 v{224+e}, -v212, v{CS+e}, v{224+e}')
        for e in range(2): A(f'v_mul_f32 v{224+e}, v213, v{224+e}')
        A('v_cvt_pk_bf16_f32 v224, v224, v225')
        A('s_mov_b64 exec, 0xffff')
        self.pub(f'buffer_store_dword v224, {vPub}, {sWS}, {soff} offen')
        A('s_mov_b64 exec, -1')

    def tr_weights(self, dst, nt, base_reg_T0, base_reg_T1):
        A = self
        for t in range(nt):
            for T, br in ((0, base_reg_T0), (1, base_reg_T1)):
                d = dst + 8 * t + 4 * T
                A(f'ds_read_b64_tr_b16 {v(d,2)}, {br} offset:{t*2048}')
                A(f'ds_read_b64_tr_b16 {v(d+2,2)}, {br} offset:{t*2048+256}')

    def tr_addr(self, d0, d1, base_sgpr_or_imm):
        A = self
        A(f'v_lshrrev_b32 v222, 4, {L}'); A(f'v_lshlrev_b32 v223, 9, v222')
        A('v_and_b32 v222, 1, v222'); A('v_lshlrev_b32 v222, 5, v222'); A('v_add_u32 v223, v223, v222')
        A(f'v_and_b32 v222, 12, {L}'); A('v_lshlrev_b32 v222, 4, v222'); A('v_add_u32 v223, v223, v222')
        A(f'v_and_b32 v222, 3, {L}'); A('v_lshlrev_b32 v222, 3, v222'); A('v_add_u32 v223, v223, v222')
        A(f'v_add_u32 {d0}, {base_sgpr_or_imm}, v223'); A(f'v_xor_b32 {d1}, 32, {d0}')

    def slice_src(self, dst, stride):
        A = self
        A(f'v_lshrrev_b32 v222, 5, {L}'); A('v_lshlrev_b32 v222, 1, v222'); A(f'v_and_b32 v223, 3, {L}'); A('v_xor_b32 v222, v222, v223')
        A('v_lshlrev_b32 v222, 4, v222'); A(f'v_lshrrev_b32 v223, 2, {L}')
        A(f'v_mul_u32_u24 v223, {stride}, v223'); A(f'v_add_u32 {dst}, v222, v223')

    def dma_slices(self, srd, vsrc, soff, n, step, lds_base_sgpr):
        A = self
        for k in range(n):
            if k % 4 == 0:
                if k == 0: A(f's_mov_b32 m0, {lds_base_sgpr}')
                else: A(f's_add_u32 m0, m0, 4096')
            A(f'buffer_load_dwordx4 {vsrc}, {srd}, {soff} offen offset:{(k%4)*1024} {self.ld} lds')
            if k + 1 < n:
                d = step - 1024 if (k % 4) != 3 else step + 3072
                A(f's_add_u32 {soff}, {soff}, {d}')

    def kv_issue(self):
        A = self
        A(f's_lshl_b32 {T0}, {G}, 23'); A(f's_lshl_b32 {T1}, {W}, 18'); A(f's_add_u32 {T0}, {T0}, {T1}')
        A(f's_lshl_b32 {T1}, {J}, 12'); A(f's_add_u32 {T0}, {T0}, {T1}'); A(f's_add_u32 {T0}, {T0}, {28672*256}')
        A(f's_lshl_b32 {T2}, {W}, 13')
        A(f'v_lshrrev_b32 v222, 4, {L}'); A('v_lshlrev_b32 v223, 1, v222'); A(f'v_and_b32 v224, 15, {L}'); A('v_xor_b32 v223, v223, v224')
        A('v_lshlrev_b32 v223, 4, v223'); A('v_lshlrev_b32 v225, 8, v222'); A('v_add_u32 v226, v223, v225'); A('v_xor_b32 v227, 128, v226')
        A('v_xor_b32 v223, v222, v224'); A('v_lshlrev_b32 v223, 4, v223'); A('v_add_u32 v228, v223, v225')
        for n in range(1, 4): A(f'v_xor_b32 v{228+n}, {64*n}, v228')
        for T in range(2):
            A(f's_add_u32 m0, {T2}, {V_L + T*4096}')
            if T: A(f's_add_u32 {T1}, {T0}, 131072')
            so = T1 if T else T0
            for n in range(4): A(f'buffer_load_dwordx4 v{226+(n&1)}, {sV}, {so} offen offset:{n*1024} {self.ld} lds')
        for T in range(2):
            A(f's_add_u32 m0, {T2}, {K_L + T*4096}')
            so = T1 if T else T0
            for n in range(4): A(f'buffer_load_dwordx4 v{228+n}, {sK}, {so} offen offset:{n*1024} {self.ld} lds')

    def v_frags(self):
        A = self
        A(f'v_lshrrev_b32 v222, 4, {L}'); A('v_lshlrev_b32 v222, 2, v222'); A(f'v_bfe_u32 v223, {L}, 2, 2'); A('v_add_u32 v222, v222, v223')
        A('v_and_b32 v223, 7, v222'); A(f's_lshl_b32 {T0}, {W}, 1'); A(f'v_xor_b32 v223, {T0}, v223'); A('v_lshlrev_b32 v223, 5, v223')
        A('v_lshlrev_b32 v222, 8, v222'); A('v_add_u32 v222, v222, v223'); A(f'v_and_b32 v223, 3, {L}'); A('v_lshlrev_b32 v223, 3, v223')
        A('v_add_u32 v222, v222, v223'); A('v_xor_b32 v223, 32, v222')
        for U in range(2):
            for w in range(4):
                d = VF + 16 * U + 4 * w
                A(f'ds_read_b64_tr_b16 {v(d,2)}, v{222+U} offset:{V_L + w*8192}')
                A(f'ds_read_b64_tr_b16 {v(d+2,2)}, v{222+U} offset:{V_L + w*8192 + 4096}')

    def k_frags(self):
        A = self
        A(f'v_and_b32 v224, 15, {L}'); A(f'v_lshrrev_b32 v225, 4, {L}'); A('v_xor_b32 v225, v225, v224'); A('v_lshlrev_b32 v225, 4, v225')
        A('v_lshlrev_b32 v224, 8, v224'); A(f's_lshl_b32 {T0}, {W}, 13'); A(f'v_add_u32 v224, {T0}, v224'); A('v_add_u32 v224, v224, v225')
        for t in range(1, 4): A(f'v_xor_b32 v{224+t}, {64*t}, v224')
        for T in range(2):
            for t in range(4): A(f'ds_read_b128 {v(KF+16*T+4*t,4)}, v{224+t} offset:{K_L + T*4096}')

    def q_loads(self): return [f'buffer_load_dwordx4 {v(QB+4*t,4)}, {vQ}, {sWS}, {oQ} offen offset:{64*t} sc1' for t in range(4)]

    def first_q(self, after_ok=None):
        A = self
        A('s_waitcnt vmcnt(8)'); A('s_barrier')
        self.stamp('V_landed')
        self.v_frags()
        A(f'v_lshlrev_b32 v240, 2, {L}')
        fl = f'buffer_load_dword v241, v240, {sDBG}, 0 offen sc1'
        A(fl)
        for t in self.q_loads(): A(t)
        A('s_waitcnt vmcnt(5)')
        self.stamp('K_landed')
        self.k_frags()
        lp = self.lab('q0'); lo = self.lab('q0ok')
        A(f's_mov_b32 {CNT}, 0')
        A(f'{lp}:')
        A('s_waitcnt vmcnt(0)')
        A('v_add_u32 v242, 0xfefefeff, v241'); A('v_not_b32 v243, v241'); A('v_and_b32 v242, v242, v243'); A('v_and_b32 v242, 0x80808080, v242')
        self.chk_regs(range(QB, QB + 16), 244)
        A('s_mov_b64 s[12:13], vcc')
        A('v_cmp_ne_u32 vcc, 0, v242'); A('s_or_b64 vcc, vcc, s[12:13]')
        A(f's_cbranch_vccz {lo}')
        A(fl)
        for t in self.q_loads(): A(t)
        A(f's_add_u32 {CNT}, {CNT}, 1'); A(f's_cmp_gt_u32 {CNT}, {MAXPOLL}'); A('s_cbranch_scc1 L_bail')
        A(f's_branch {lp}')
        A(f'{lo}:')
        A(f'v_cmp_ne_u32 vcc, {OWN4}, v241'); A(f's_lshl_b32 {T0}, {G}, 3'); A(f's_lshr_b64 s[12:13], vcc, {T0}'); A('s_and_b32 s12, s12, 0xff')
        A(f's_cmp_eq_u32 s12, 0'); A(f's_cselect_b32 {FAST}, 1, 0')
        if self.o.force_slow: A(f's_mov_b32 {FAST}, 0')
        A('s_waitcnt lgkmcnt(0)')

    def s2(self):
        A = self
        ST0, ST1, M, TT = 180, 184, 188, 189
        for t in range(4):
            for T, ST in ((0, ST0), (1, ST1)):
                A(f'v_mfma_f32_16x16x32_bf16 {v(ST,4)}, {v(KF+16*T+4*t,4)}, {v(QB+4*t,4)}, {v(ST,4) if t else 0}')
        A(f'v_max3_f32 v{M}, v{ST0}, v{ST0+1}, v{ST0+2}'); A(f'v_max3_f32 v{M}, v{M}, v{ST0+3}, v{ST1}')
        A(f'v_max3_f32 v{M}, v{M}, v{ST1+1}, v{ST1+2}'); A(f'v_max_f32 v{M}, v{M}, v{ST1+3}')
        self.swap_red('v_max_f32', M, TT, 16); self.swap_red('v_max_f32', M, TT, 32)
        A('s_mov_b64 exec, 15'); A(f'ds_write_b32 {vMW}, v{M}'); A('s_mov_b64 exec, -1')
        A('s_waitcnt lgkmcnt(0)'); A('s_barrier')
        A(f'ds_read_b128 {v(192,4)}, {vMR}'); A('s_waitcnt lgkmcnt(0)')
        A(f'v_max3_f32 v{M}, v192, v193, v194'); A(f'v_max_f32 v{M}, v{M}, v195'); A(f'v_mul_f32 v{M}, {CEXP}, v{M}')
        for k in range(8): A(f'v_fma_f32 v{ST0+k}, v{ST0+k}, {CEXP}, -v{M}')
        for k in range(8): A(f'v_exp_f32 v{ST0+k}, v{ST0+k}')
        for k in range(4): A(f'v_cvt_pk_bf16_f32 v{192+k}, v{ST0+2*k}, v{ST0+2*k+1}')
        A(f'v_add_f32 v{TT}, v{ST0}, v{ST0+1}'); A(f'v_add_f32 v196, v{ST0+2}, v{ST0+3}'); A(f'v_add_f32 v197, v{ST0+4}, v{ST0+5}'); A(f'v_add_f32 v198, v{ST0+6}, v{ST0+7}')
        A(f'v_add_f32 v{TT}, v{TT}, v196'); A('v_add_f32 v197, v197, v198'); A(f'v_add_f32 v{TT}, v{TT}, v197')
        A(f's_mov_b64 exec, {MASK4}'); A(f'ds_write_b128 {vPW}, {v(192,4)}'); A(f'ds_write_b32 {vLW}, v{TT}'); A('s_mov_b64 exec, -1')
        A('s_waitcnt lgkmcnt(0)'); A('s_barrier')
        PB = 192
        for w in range(4): A(f'ds_read_b128 {v(PB+4*w,4)}, {vPR} offset:{w*256}')
        A(f'ds_read_b32 v190, {vLR}')
        A('s_waitcnt lgkmcnt(0)')
        OT0, OT1 = 208, 212
        mf = [f'v_mfma_f32_16x16x32_bf16 {v(OT,4)}, {v(VF+16*U+4*w,4)}, {v(PB+4*w,4)}, {v(OT,4) if w else 0}' for w in range(4) for U, OT in ((0, OT0), (1, OT1))]
        va = ['v_add_f32_dpp v190, v190, v190 row_ror:4 row_mask:0xf bank_mask:0xf', 'v_add_f32_dpp v190, v190, v190 row_ror:8 row_mask:0xf bank_mask:0xf',
              'v_mov_b32 v191, v190', 'v_permlane16_swap_b32 v190, v191', 'v_add_f32 v190, v190, v191',
              'v_mov_b32 v191, v190', 'v_permlane32_swap_b32 v190, v191', 'v_add_f32 v191, v190, v191', f'v_mov_b32 v190, v{M}']
        self.interleave(mf, va, per=2)
        lm = self.lab('noml')
        A(f's_cmp_lg_u32 {W}, 3'); A(f's_cbranch_scc1 {lm}')
        A('s_mov_b64 exec, 15'); self.pub(f'buffer_store_dwordx2 v[190:191], {vMLp}, {sWS}, {oML} offen'); A('s_mov_b64 exec, -1')
        A(f'{lm}:')
        for k in range(2):
            A(f'v_cvt_pk_bf16_f32 v{216+k}, v{OT0+2*k}, v{OT0+2*k+1}')
        for k in range(2):
            A(f'v_cvt_pk_bf16_f32 v{218+k}, v{OT1+2*k}, v{OT1+2*k+1}')
        A(f's_mov_b64 exec, {MASK4}'); self.pub(f'buffer_store_dwordx4 {v(216,4)}, {vRSp}, {sWS}, {oRS} offen'); A('s_mov_b64 exec, -1')

    def common_addr(self):
        A = self
        A(f'v_and_b32 v222, 15, {L}'); A(f'v_lshrrev_b32 v223, 4, {L}')
        A('v_lshlrev_b32 v224, 4, v223')
        A(f'v_lshlrev_b32 {vXF}, 6, v222'); A(f'v_add_u32 {vXF}, {vXF}, v224')
        A('v_and_b32 v225, 3, v222')
        A(f'v_lshlrev_b32 {vQ}, 8, v225'); A(f'v_add_u32 {vQ}, {vQ}, v224')
        A(f's_lshl_b32 {T0}, {W}, 11'); A(f's_lshl_b32 {T1}, {J}, 4'); A(f's_add_u32 {T0}, {T0}, {T1}')
        A(f'v_lshlrev_b32 {vRSp}, 13, v222'); A('v_lshlrev_b32 v226, 9, v223'); A(f'v_add3_u32 {vRSp}, {vRSp}, v226, {T0}')
        A(f's_lshl_b32 {T1}, {J}, 3'); A(f'v_lshlrev_b32 {vMLp}, 8, v225'); A(f'v_add_u32 {vMLp}, {T1}, {vMLp}')
        A(f's_lshl_b32 {T0}, {W}, 2'); A(f's_add_u32 {T0}, {T0}, {MX}'); A(f'v_lshlrev_b32 {vMW}, 4, v225'); A(f'v_add_u32 {vMW}, {T0}, {vMW}')
        A(f'v_lshlrev_b32 {vMR}, 4, v225'); A(f'v_add_u32 {vMR}, {MX}, {vMR}')
        A('v_lshlrev_b32 v226, 6, v225'); A('v_add_u32 v226, v226, v224')
        A(f'v_add_u32 {vPR}, {PX}, v226'); A(f's_lshl_b32 {T0}, {W}, 8'); A(f'v_add_u32 {vPW}, {T0}, {vPR}')
        A('v_lshlrev_b32 v227, 6, v225'); A('v_lshlrev_b32 v228, 2, v223'); A(f's_lshl_b32 {T0}, {W}, 4'); A(f's_add_u32 {T0}, {T0}, {LX}')
        A(f'v_add3_u32 {vLW}, v227, v228, {T0}')
        A(f'v_lshrrev_b32 v228, 2, {L}'); A('v_lshlrev_b32 v228, 2, v228'); A('v_add_u32 v228, v228, v227'); A(f'v_add_u32 {vLR}, {LX}, v228')
        A(f's_lshl_b32 {T0}, {W}, 7'); A(f's_add_u32 {T0}, {T0}, {RED_A}'); A(f'v_lshlrev_b32 {vRedW}, 2, v222'); A(f'v_add_u32 {vRedW}, {T0}, {vRedW}')
        A(f'v_lshlrev_b32 {vRedR}, 3, v222'); A(f'v_add_u32 {vRedR}, {RED_A}, {vRedR}')
        A(f's_lshl_b32 {T0}, {W}, 4'); A(f's_lshl_b64 {MGRP}, 0xffff, {T0}')
        A('s_mov_b32 s8, 0x000f000f'); A('s_mov_b32 s9, 0x000f000f')
        A(f's_mov_b32 {CEXP}, 0x3e0293ee')
        A(f's_lshl_b32 {T0}, {G}, 10')
        for r, off in ((oQ, OFF_Q), (oO, OFF_O), (oX1, OFF_X1), (oGU, OFF_GU), (oX2, OFF_X2), (oML, OFF_ML)): A(f's_add_u32 {r}, {T0}, {off}')
        A(f's_lshl_b32 {T0}, {G}, 15'); A(f's_add_u32 {oRS}, {T0}, {OFF_RS}')
        A(f's_mov_b32 {oC1}, {OFF_C1}'); A(f's_mov_b32 {oC2}, {OFF_C2}')

    def next_pass(self):
        A = self
        for r in (oQ, oO, oX1, oGU, oML): A(f's_add_u32 {r}, {r}, 8192')
        A(f's_add_u32 {oRS}, {oRS}, 262144'); A(f's_add_u32 {oC1}, {oC1}, 131072'); A(f's_add_u32 {oC2}, {oC2}, 262144')
        A(f's_mov_b32 {PASS}, 1')

    def clears_and_flag(self, is_w):
        A = self; l = self.lab('noclr')
        A(f's_cmp_lg_u32 {W}, 3'); A(f's_cbranch_scc1 {l}')
        for k in range(4): A(f'v_mov_b32 v{232+k}, -1')
        A(f's_mul_i32 {T0}, s2, {CLR_PER_CU}'); A(f's_add_u32 {T0}, {T0}, {CLR0}')
        A(f'v_lshlrev_b32 v236, 4, {L}')
        for k in range(5):
            if k == 4: A(f's_add_u32 {T0}, {T0}, 4096')
            A(f'buffer_store_dwordx4 {v(232,4)}, v236, {sWS}, {T0} offen offset:{(k%4)*1024} sc1')
        if is_w:
            A(f's_lshl_b32 {T0}, {G}, 10'); A(f's_lshl_b32 {T1}, {J}, 6'); A(f's_add_u32 {T0}, {T0}, {T1}')
            A('s_mov_b64 exec, 15'); A(f'buffer_store_dwordx4 {v(232,4)}, v236, {sWS}, {T0} offen sc1'); A('s_mov_b64 exec, -1')
        A(f'{l}:')
    def set_flag(self, younger):
        A = self; l = self.lab('noflag')
        A(f's_cmp_lg_u32 {W}, 3'); A(f's_cbranch_scc1 {l}')
        A(f's_waitcnt vmcnt({younger})')
        A(f's_lshl_b32 {T0}, {G}, 5'); A(f's_add_u32 {T0}, {T0}, {J}')
        A(f's_and_b32 {T1}, {OWN4}, 0xff'); A(f'v_mov_b32 v237, {T1}'); A('v_mov_b32 v238, 0')
        A('s_mov_b64 exec, 1'); A(f'buffer_store_byte v237, v238, {sDBG}, {T0} offen sc1'); A('s_mov_b64 exec, -1')
        A(f'{l}:')
    def qpre(self):
        A = self
        A(f's_lshl_b32 {T0}, {J}, 17'); A(f's_lshl_b32 {T1}, {W}, 15'); A(f's_add_u32 {T0}, {T0}, {T1}'); A(f's_lshl_b32 {T1}, {G}, 10'); A(f's_add_u32 {T0}, {T0}, {T1}')
        A(f'v_lshlrev_b32 v239, 4, {L}'); A(f's_mov_b32 m0, {DUM_L}')
        for k in range(4):
            A(f'buffer_load_dwordx4 v239, {sWQ}, {T0} offen {self.ld} lds')
            if k < 3: A(f's_add_u32 {T0}, {T0}, 8192')

    def build(self):
        A = self
        A('s_cmp_ge_u32 s2, 256'); A('s_cbranch_scc1 L_exit')
        if self.o.stamps: A('s_memrealtime s[92:93]')
        for k, off in ((3, 24), (10, 88), (2, 16), (1, 8), (0, 0), (9, 80)): A(f's_load_dwordx2 s[{srd_lo(k)}:{srd_lo(k)+1}], s[0:1], {off}')
        A(f'v_and_b32 {L}, 63, v0'); A('v_lshrrev_b32 v222, 6, v0'); A(f'v_readfirstlane_b32 {W}, v222')
        A(f's_and_b32 {G}, s2, 7'); A(f's_lshr_b32 {J}, s2, 3'); A(f's_and_b32 {R}, {J}, 15')
        sizes = {0: 1024, 1: 0x4000000, 2: 0x4000000, 3: 0x400000, 4: 0x400000, 5: 1835008, 6: 1835008, 7: 1835008, 8: 1024, 9: 256, 10: 0x10000000}
        for k, sz in sizes.items():
            A(f's_mov_b32 s{srd_lo(k)+2}, {sz}'); A(f's_mov_b32 s{srd_lo(k)+3}, 0x20000')
        A(f's_getreg_b32 {T0}, hwreg(HW_REG_XCC_ID, 0, 4)'); A(f's_add_u32 {T0}, {T0}, 1'); A(f's_mul_i32 {OWN4}, {T0}, 0x01010101')
        A(f's_mov_b32 {FAST}, 0'); A(f's_mov_b32 {PASS}, 0')
        if self.o.stamps: A(f'v_mov_b32 {vST}, 0')
        A('s_waitcnt lgkmcnt(0)')
        if self.o.stamps:
            A('s_mov_b32 m0, 63'); A(f'v_writelane_b32 {vST}, s92, m0')
        for k, off in ((4, 32), (5, 48), (6, 56), (7, 64), (8, 72)): A(f's_load_dwordx2 s[{srd_lo(k)}:{srd_lo(k)+1}], s[0:1], {off}')
        A(f's_cmp_ge_u32 {J}, 16'); A('s_cbranch_scc1 L_F')
        self.build_w()
        self.build_f()
        A('L_bail:')
        self.end()
        A('L_exit:'); A('s_endpgm')

    def build_w(self):
        A = self
        self.clears_and_flag(True)
        self.qpre()
        self.set_flag(4)
        self.common_addr()
        A(f'v_and_b32 v222, 7, {L}'); A('v_lshlrev_b32 v222, 3, v222'); A(f'v_lshrrev_b32 v223, 5, {L}'); A('v_lshlrev_b32 v223, 2, v223')
        A(f's_lshl_b32 {T0}, {R}, 6'); A(f'v_add3_u32 {vXp}, v222, v223, {T0}')
        A(f'buffer_load_dwordx4 {v(XF,4)}, {vXF}, {sX}, 0 offen'); A(f'buffer_load_dword {vRES}, {vXp}, {sX}, 0 offen')
        self.slice_src('v240', 8192)
        A(f's_lshl_b32 {T0}, {W}, 20'); A(f's_lshl_b32 {T1}, {G}, 10'); A(f's_add_u32 {T0}, {T0}, {T1}'); A(f's_lshl_b32 {T1}, {R}, 6'); A(f's_add_u32 {T0}, {T0}, {T1}')
        A(f's_lshl_b32 {T1}, {W}, 13'); A(f's_add_u32 {T1}, {T1}, {W_L}')
        self.dma_slices(sWQ, 'v240', T0, 8, 16 * 8192, T1)
        self.kv_issue()
        A(f'v_and_b32 v222, 31, {L}'); A(f'v_lshrrev_b32 v223, 5, {L}')
        A(f's_lshl_b32 {T0}, {R}, 11'); A(f's_lshl_b32 {T1}, {W}, 9'); A(f's_add_u32 {T0}, {T0}, {T1}')
        A(f'v_lshlrev_b32 {vRSg}, 4, v222'); A('v_lshlrev_b32 v224, 3, v223'); A(f'v_add3_u32 {vRSg}, {vRSg}, v224, {T0}')
        A(f's_lshr_b32 {T0}, {R}, 2'); A(f's_lshl_b32 {T0}, {T0}, 8'); A(f'v_lshlrev_b32 {vMLg}, 3, v222'); A(f'v_add_u32 {vMLg}, {T0}, {vMLg}')
        A(f's_lshl_b32 {T0}, {R}, 6'); A(f's_lshl_b32 {T1}, {W}, 3'); A(f's_add_u32 {T0}, {T0}, {T1}')
        A('v_lshlrev_b32 v224, 5, v223'); A(f'v_bfe_u32 v225, {L}, 4, 1'); A('v_lshlrev_b32 v225, 2, v225'); A(f'v_add3_u32 {vOp}, v224, v225, {T0}')
        A(f'v_lshrrev_b32 v223, 3, {L}'); A(f'v_and_b32 v224, 7, {L}'); A('v_lshlrev_b32 v224, 4, v224')
        A(f's_lshl_b32 {T0}, {R}, 10'); A(f's_lshl_b32 {T1}, {G}, 7'); A(f's_add_u32 {T1}, {T1}, {T0}')
        A('v_lshlrev_b32 v225, 14, v223'); A(f'v_add3_u32 {vCp}, v225, v224, {T1}')
        A(f's_lshl_b32 {T1}, {G}, 14'); A(f's_add_u32 {T1}, {T1}, {T0}'); A('v_lshlrev_b32 v225, 7, v223'); A(f'v_add3_u32 {vCg}, v225, v224, {T1}')
        A(f'v_add_u32 {vRedR4}, {RED_B}, v224')
        A(f'v_and_b32 v222, 15, {L}'); A('v_lshlrev_b32 v222, 2, v222'); A(f's_lshl_b32 {T0}, {R}, 6'); A(f'v_add_u32 {vPub}, {T0}, v222')
        A(f's_lshl_b32 {T0}, {W}, 13'); A(f's_add_u32 {T0}, {T0}, {W_L}'); self.tr_addr('v241', 'v242', T0)
        A('s_waitcnt vmcnt(16)')
        self.stamp('wq_landed')
        self.tr_weights(WA, 4, 'v241', 'v242')
        for k in range(4): A(f'v_mov_b32 v{244+k}, 0x3f803f80')
        A('s_waitcnt lgkmcnt(0)')
        self.gemv_core(WA, RED_C, a=244)
        A('s_branch L_W_S1')
        A('L_W_NEXT:')
        self.poll([f'buffer_load_dwordx4 {v(XF,4)}, {vXF}, {sWS}, {oX2} offen sc1', f'buffer_load_dword {vRES}, {vXp}, {sWS}, {oX2} offen sc1'],
                  lambda: (A(f'v_max_u32 v220, v{XF}, {vRES}'), A(f'v_max3_u32 v220, v220, v{XF+1}, v{XF+2}'), A(f'v_max_u32 v220, v220, v{XF+3}'), A('v_cmp_eq_u32 vcc, -1, v220')), 'x2')
        self.stamp('x_ok')
        A('L_W_S1:')
        self.gemv_core(WA, RED_A, stats=True)
        A('s_waitcnt lgkmcnt(0)'); A('s_barrier')
        l = self.lab('s1w'); A(f's_cmp_lg_u32 {W}, 0'); A(f's_cbranch_scc1 {l}')
        self.ln_finalize_publish(oQ, True)
        A(f'{l}:')
        self.stamp('q_pub')
        l1 = self.lab('p1q'); l2 = self.lab('s2')
        A(f's_cmp_lg_u32 {PASS}, 0'); A(f's_cbranch_scc1 {l1}')
        self.first_q()
        A(f's_branch {l2}')
        A(f'{l1}:')
        self.poll(self.q_loads(), lambda: self.chk_regs(range(QB, QB + 16), 244), 'q')
        A(f'{l2}:')
        self.stamp('q_ok')
        self.s2()
        self.stamp('rs_pub')
        self.poll([f'buffer_load_dwordx2 v[164:165], {vRSg}, {sWS}, {oRS} offen sc1', f'buffer_load_dwordx2 v[166:167], {vMLg}, {sWS}, {oML} offen sc1'],
                  lambda: self.chk_regs([164, 165, 166, 167], 220), 'rs')
        self.stamp('rs_ok')
        l = self.lab('wo0'); A(f's_cmp_lg_u32 {PASS}, 0'); A(f's_cbranch_scc1 {l}')
        self.slice_src('v240', 1024)
        A(f's_lshl_b32 {T0}, {G}, 19'); A(f's_lshl_b32 {T1}, {W}, 17'); A(f's_add_u32 {T0}, {T0}, {T1}'); A(f's_lshl_b32 {T1}, {R}, 6'); A(f's_add_u32 {T0}, {T0}, {T1}')
        A(f's_lshl_b32 {T1}, {W}, 13'); A(f's_add_u32 {T1}, {T1}, {W_L}')
        A('s_waitcnt lgkmcnt(0)')
        self.dma_slices(sWO, 'v240', T0, 8, 16 * 1024, T1)
        A(f'{l}:')
        M, TT, Wt, Lr = 168, 169, 170, 171
        A(f'v_max_f32_dpp v{M}, v166, v166 row_ror:1 row_mask:0xf bank_mask:0xf')
        A('v_lshlrev_b32 v172, 16, v164'); A('v_and_b32 v173, 0xffff0000, v164')
        self.dpp('v_max_f32', M, 2)
        A('v_lshlrev_b32 v174, 16, v165'); A('v_and_b32 v175, 0xffff0000, v165')
        self.dpp('v_max_f32', M, 4); self.dpp('v_max_f32', M, 8)
        self.swap_red('v_max_f32', M, TT, 16)
        A(f'v_sub_f32 v{Wt}, v166, v{M}'); A(f'v_exp_f32 v{Wt}, v{Wt}')
        for k in range(4): A(f'v_mul_f32 v{172+k}, v{Wt}, v{172+k}')
        A(f'v_mul_f32 v{Lr}, v{Wt}, v167')
        A('v_permlane16_swap_b32 v172, v174'); A('v_permlane16_swap_b32 v173, v175')
        A(f'v_mov_b32 v{TT}, v{Lr}'); A('v_add_f32 v172, v172, v174'); A('v_add_f32 v173, v173, v175')
        A(f'v_permlane16_swap_b32 v{Lr}, v{TT}'); A(f'v_add_f32 v{Lr}, v{Lr}, v{TT}')
        for ror in (8, 4, 2, 1):
            self.dpp('v_add_f32', Lr, ror); self.dpp('v_add_f32', 172, ror); self.dpp('v_add_f32', 173, ror)
        A(f'v_rcp_f32 v{Lr}, v{Lr}'); A(f'v_mul_f32 v172, v{Lr}, v172'); A(f'v_mul_f32 v173, v{Lr}, v173')
        A('v_cvt_pk_bf16_f32 v172, v172, v173')
        A('s_mov_b32 exec_lo, 0x00010001'); A('s_mov_b32 exec_hi, 0x00010001')
        self.pub(f'buffer_store_dword v172, {vOp}, {sWS}, {oO} offen')
        A('s_mov_b64 exec, -1')
        self.stamp('o_pub')
        self.poll([f'buffer_load_dwordx4 {v(XF,4)}, {vXF}, {sWS}, {oO} offen sc1'], lambda: self.chk_regs(range(XF, XF + 4), 220), 'o')
        self.stamp('o_ok')
        l = self.lab('wo1'); A(f's_cmp_lg_u32 {PASS}, 0'); A(f's_cbranch_scc1 {l}')
        A(f's_lshl_b32 {T0}, {W}, 13'); A(f's_add_u32 {T0}, {T0}, {W_L}'); self.tr_addr('v241', 'v242', T0)
        self.tr_weights(WB, 4, 'v241', 'v242')
        A('s_waitcnt lgkmcnt(0)')
        A(f'{l}:')
        self.gemv_core(WB, RED_B)
        A('s_waitcnt lgkmcnt(0)'); A('s_barrier')
        l5 = self.lab('w_s5'); A(f's_cmp_lg_u32 {W}, 0'); A(f's_cbranch_scc1 {l5}')
        for w in range(4): A(f'ds_read_b128 {v(224+4*w,4)}, {vRedR4} offset:{w*128}')
        A('s_waitcnt lgkmcnt(0)')
        for e in range(4):
            A(f'v_add_f32 v{224+e}, v{224+e}, v{228+e}'); A(f'v_add_f32 v{232+e}, v{232+e}, v{236+e}')
        for e in range(4): A(f'v_add_f32 v{224+e}, v{224+e}, v{232+e}')
        A(f'buffer_store_dwordx4 {v(224,4)}, {vCp}, {sWS}, {oC1} offen sc1')
        self.stamp('c1_pub')
        self.delay(self.o.d1)
        self.poll([f'buffer_load_dwordx4 {v(164,4)}, {vCg}, {sWS}, {oC1} offen sc1'], lambda: self.chk_regs(range(164, 168), 220), 'c1')
        self.stamp('c1_ok')
        A('v_permlane32_swap_b32 v164, v166'); A('v_permlane32_swap_b32 v165, v167')
        A('v_add_f32 v164, v164, v166'); A('v_add_f32 v165, v165, v167')
        A('v_mov_b32 v168, v164'); A('v_mov_b32 v169, v165')
        A('v_permlane16_swap_b32 v164, v168'); A('v_permlane16_swap_b32 v165, v169')
        A('v_add_f32 v164, v164, v168'); A('v_add_f32 v165, v165, v169')
        self.dpp('v_add_f32', 164, 8); self.dpp('v_add_f32', 165, 8)
        A(f'v_lshlrev_b32 v168, 16, {vRES}'); A(f'v_and_b32 v169, 0xffff0000, {vRES}')
        A('v_add_f32 v164, v164, v168'); A('v_add_f32 v165, v165, v169')
        A('v_cvt_pk_bf16_f32 v164, v164, v165')
        A('s_mov_b32 exec_lo, 0xff'); A('s_mov_b32 exec_hi, 0xff')
        self.pub(f'buffer_store_dword v164, {vXp}, {sWS}, {oX1} offen')
        A('s_mov_b64 exec, -1')
        self.stamp('x1_pub')
        A(f'{l5}:')
        A(f's_cmp_lg_u32 {PASS}, 0'); A('s_cbranch_scc1 L_W_END')
        self.next_pass()
        A('s_branch L_W_NEXT')
        A('L_W_END:')
        self.end()

    def delay(self, n):
        while n > 0:
            self(f's_nop {min(n,16)-1}'); n -= min(n, 16)

    def build_f(self):
        A = self
        A('L_F:')
        self.clears_and_flag(False)
        self.qpre()
        self.set_flag(4)
        self.kv_issue()
        self.common_addr()
        A(f'v_and_b32 v222, 15, {L}'); A(f'v_lshrrev_b32 v223, 4, {L}')
        A(f's_and_b32 {T0}, {R}, 1'); A(f's_lshl_b32 {T0}, {T0}, 9'); A(f's_lshr_b32 {T1}, {R}, 1'); A(f's_lshl_b32 {T1}, {T1}, 6'); A(f's_add_u32 {T0}, {T0}, {T1}')
        A('v_lshlrev_b32 v224, 2, v222'); A(f'v_add_u32 {vPub}, {T0}, v224')
        A(f's_lshl_b32 {T0}, {R}, 11'); A(f's_and_b32 {T1}, {W}, 1'); A(f's_lshl_b32 {T1}, {T1}, 10'); A(f's_add_u32 {T0}, {T0}, {T1}')
        A(f's_lshl_b32 {T1}, {G}, 7'); A(f's_add_u32 {T1}, {T1}, {T0}')
        A('v_lshlrev_b32 v225, 15, v223'); A(f'v_add3_u32 {vCp}, v225, v224, {T1}')
        A(f's_lshl_b32 {T1}, {G}, 15'); A(f's_add_u32 {T1}, {T1}, {T0}')
        A(f'v_lshrrev_b32 v225, 3, {L}'); A('v_lshlrev_b32 v225, 7, v225'); A(f'v_and_b32 v226, 7, {L}'); A('v_lshlrev_b32 v227, 3, v226')
        A(f'v_add3_u32 {vCg}, v225, v227, {T1}')
        A(f's_lshl_b32 {T0}, {R}, 6'); A(f's_and_b32 {T1}, {W}, 1'); A(f's_lshl_b32 {T1}, {T1}, 5'); A(f's_add_u32 {T0}, {T0}, {T1}')
        A('v_lshlrev_b32 v226, 2, v226'); A(f'v_add_u32 {vXp}, {T0}, v226')
        A(f'v_min_u32 {vGU}, 223, v0'); A(f'v_lshlrev_b32 {vGU}, 1, {vGU}')
        A(f'v_lshlrev_b32 {vHW}, 1, v0'); A(f'v_add_u32 {vHW}, {HX}, {vHW}')
        A('v_and_b32 v224, 3, v222'); A('v_lshlrev_b32 v224, 6, v224'); A('v_lshlrev_b32 v225, 4, v223'); A('v_add_u32 v224, v224, v225'); A(f'v_add_u32 {vHR}, {HX}, v224')
        self.first_q()
        A(f's_lshl_b32 {T0}, {G}, 19'); A(f's_lshl_b32 {T1}, {R}, 15'); A(f's_add_u32 {T0}, {T0}, {T1}'); A(f's_lshl_b32 {T1}, {W}, 13'); A(f's_add_u32 {T0}, {T0}, {T1}')
        A(f'v_lshlrev_b32 v239, 4, {L}'); A(f's_mov_b32 m0, {DUM_L}')
        for k in range(8):
            A(f'buffer_load_dwordx4 v239, {sWO}, {T0} offen {self.ld} lds')
            if k < 7: A(f's_add_u32 {T0}, {T0}, 1024')
        A('s_branch L_F_S2')
        A('L_F_NEXT:')
        self.poll(self.q_loads(), lambda: self.chk_regs(range(QB, QB + 16), 244), 'qf')
        A('L_F_S2:')
        self.stamp('q_ok')
        self.s2()
        self.stamp('rs_pub')
        l = self.lab('late'); A(f's_cmp_lg_u32 {PASS}, 0'); A(f's_cbranch_scc1 {l}')
        self.late_loads()
        A(f'{l}:')
        l6 = self.lab('nos6'); A(f's_cmp_ge_u32 {R}, 14'); A(f's_cbranch_scc1 {l6}')
        self.poll([f'buffer_load_dwordx4 {v(XF,4)}, {vXF}, {sWS}, {oX1} offen sc1'], lambda: self.chk_regs(range(XF, XF + 4), 220), 'x1')
        self.stamp('x1_ok')
        self.gemv_core(WA, RED_A, stats=True)
        A('s_waitcnt lgkmcnt(0)'); A('s_barrier')
        l = self.lab('s6w'); A(f's_cmp_lg_u32 {W}, 0'); A(f's_cbranch_scc1 {l}')
        self.ln_finalize_publish(oGU, True)
        A(f'{l}:')
        self.stamp('gu_pub')
        A(f'{l6}:')
        self.poll([f'buffer_load_ushort v164, {vGU}, {sWS}, {oGU} offen sc1', f'buffer_load_ushort v165, {vGU}, {sWS}, {oGU} offen offset:512 sc1',
                   f'buffer_load_dword {vRES}, {vXp}, {sWS}, {oX1} offen sc1'],
                  lambda: (A('v_max_u32 v166, v164, v165'), A('v_cmp_eq_u32 s[12:13], -1, ' + vRES), A('v_cmp_eq_u32 vcc, 0xffff, v166'), A('s_or_b64 vcc, vcc, s[12:13]')), 'gu')
        self.stamp('gu_ok')
        A('v_lshlrev_b32 v164, 16, v164'); A('v_lshlrev_b32 v165, 16, v165')
        A('v_mul_f32 v166, 0xbfb8aa3b, v164'); A('v_exp_f32 v166, v166'); A('v_add_f32 v166, 1.0, v166'); A('v_rcp_f32 v166, v166')
        A('v_mul_f32 v164, v164, v165'); A('v_mul_f32 v164, v164, v166'); A('v_cvt_pk_bf16_f32 v164, v164, v164')
        A(f'ds_write_b16 {vHW}, v164'); A('s_waitcnt lgkmcnt(0)'); A('s_barrier')
        A(f's_cmp_ge_u32 {W}, 2'); A('s_cbranch_scc1 L_F_TAIL')
        A(f'ds_read_b128 {v(164,4)}, {vHR}'); A(f'ds_read_b128 {v(168,4)}, {vHR} offset:256'); A('s_waitcnt lgkmcnt(0)')
        for r in range(4): A(f'v_mfma_f32_16x16x32_bf16 {v(ACC+4*r,4)}, {v(164,4)}, {v(WB+4*r,4)}, 0')
        for r in range(3): A(f'v_mfma_f32_16x16x32_bf16 {v(ACC+4*r,4)}, {v(168,4)}, {v(WB+16+4*r,4)}, {v(ACC+4*r,4)}')
        A(f'v_add_f32 v216, v{ACC}, v{ACC+5}'); A(f'v_add_f32 v217, v{ACC+10}, v{ACC+15}'); A('v_add_f32 v216, v216, v217')
        lp1 = self.lab('c2p1'); lp2 = self.lab('c2d')
        A(f's_cmp_lg_u32 {PASS}, 0'); A(f's_cbranch_scc1 {lp1}')
        A(f's_add_u32 {T0}, {oC2}, 131072')
        A(f'buffer_store_dword v216, {vCp}, {sWS}, {oC2} offen sc1'); A(f'buffer_store_dword v216, {vCp}, {sWS}, {T0} offen sc1')
        A(f's_branch {lp2}')
        A(f'{lp1}:')
        A('s_mov_b64 exec, 0xffff'); A(f'buffer_store_dword v216, {vCp}, {sWS}, {oC2} offen sc1'); A('s_mov_b64 exec, -1')
        self.stamp('c2_pub')
        A(f's_cmp_lg_u32 {G}, 0'); A('s_cbranch_scc1 L_F_END')
        A(f'{lp2}:')
        self.stamp('c2_pub')
        self.delay(self.o.d2)
        self.poll([f'buffer_load_dwordx2 v[164:165], {vCg}, {sWS}, {oC2} offen sc1'], lambda: self.chk_regs([164, 165], 220), 'c2')
        self.stamp('c2_ok')
        self.dpp('v_add_f32', 164, 8); self.dpp('v_add_f32', 165, 8)
        A('v_mov_b32 v168, v164'); A('v_mov_b32 v169, v165')
        A('v_permlane16_swap_b32 v164, v168'); A('v_permlane16_swap_b32 v165, v169')
        A('v_add_f32 v164, v164, v168'); A('v_add_f32 v165, v165, v169')
        A('v_mov_b32 v168, v164'); A('v_mov_b32 v169, v165')
        A('v_permlane32_swap_b32 v164, v168'); A('v_permlane32_swap_b32 v165, v169')
        A('v_add_f32 v164, v164, v168'); A('v_add_f32 v165, v165, v169')
        A(f'v_lshlrev_b32 v168, 16, {vRES}'); A(f'v_and_b32 v169, 0xffff0000, {vRES}')
        A('v_add_f32 v164, v164, v168'); A('v_add_f32 v165, v165, v169')
        A('v_cvt_pk_bf16_f32 v164, v164, v165')
        A('s_mov_b64 exec, 0xff')
        lo = self.lab('out'); A(f's_cmp_lg_u32 {PASS}, 0'); A(f's_cbranch_scc1 {lo}')
        self.pub(f'buffer_store_dword v164, {vXp}, {sWS}, {oX2} offen')
        A('s_mov_b64 exec, -1')
        self.stamp('x2_pub')
        A('L_F_TAIL:')
        A(f's_cmp_lg_u32 {PASS}, 0'); A('s_cbranch_scc1 L_F_END')
        self.next_pass()
        A('s_branch L_F_NEXT')
        A(f'{lo}:')
        A(f'buffer_store_dword v164, {vXp}, {sOUT}, 0 offen')
        A('s_mov_b64 exec, -1')
        self.stamp('x2_pub')
        A('L_F_END:')
        self.end()

    def late_loads(self):
        A = self
        A('s_waitcnt lgkmcnt(0)')
        A(f's_lshl_b32 {T2}, {R}, 2'); A(f's_add_u32 {T2}, {T2}, {W}')
        A(f'v_min_u32 v222, 55, {L}'); A('v_mul_u32_u24 v223, 9363, v222'); A('v_lshrrev_b32 v223, 18, v223')
        A('v_mul_u32_u24 v224, 28, v223'); A('v_sub_u32 v224, v222, v224'); A('v_lshlrev_b32 v224, 4, v224')
        A('v_mul_u32_u24 v223, 3584, v223'); A('v_add_u32 v239, v223, v224')
        A(f's_mul_i32 {T0}, {T2}, {8*3584}'); A(f's_mul_i32 {T1}, {G}, 448'); A(f's_add_u32 {T0}, {T0}, {T1}')
        A(f's_mov_b32 m0, {DUM_L}')
        for k in range(4):
            A(f'buffer_load_dwordx4 v239, {sW1}, {T0} offen {self.ld} lds'); A(f'buffer_load_dwordx4 v239, {sW3}, {T0} offen {self.ld} lds')
            if k < 3: A(f's_add_u32 {T0}, {T0}, {2*3584}')
        A(f's_mul_i32 {T0}, {G}, {224*1024}'); A(f's_mul_i32 {T1}, {T2}, 3584'); A(f's_add_u32 {T0}, {T0}, {T1}')
        A(f'v_lshlrev_b32 v239, 4, {L}')
        for k in range(4):
            if k == 3: A('s_mov_b32 exec_hi, 0')
            A(f'buffer_load_dwordx4 v239, {sW2}, {T0} offen {self.ld} lds')
            if k < 3: A(f's_add_u32 {T0}, {T0}, 1024')
        A('s_mov_b64 exec, -1')
        A('s_waitcnt vmcnt(0)')
        self.stamp('late_pre')
        A(f's_and_b32 {T0}, {R}, 1'); A(f's_cmp_eq_u32 {T0}, 0')
        A('s_cselect_b32 s84, s60, s64'); A('s_cselect_b32 s85, s61, s65'); A('s_mov_b32 s86, 1835008'); A('s_mov_b32 s87, 0x20000')
        l = self.lab('nof1'); A(f's_cmp_ge_u32 {R}, 14'); A(f's_cbranch_scc1 {l}')
        self.slice_src('v240', 3584)
        A(f's_mul_i32 {T0}, {W}, {128*3584}'); A(f's_mul_i32 {T1}, {G}, 448'); A(f's_add_u32 {T0}, {T0}, {T1}')
        A(f's_lshr_b32 {T1}, {R}, 1'); A(f's_lshl_b32 {T1}, {T1}, 6'); A(f's_add_u32 {T0}, {T0}, {T1}')
        A(f's_lshl_b32 {T1}, {W}, 13'); A(f's_add_u32 {T1}, {T1}, {W_L}')
        self.dma_slices(sWF, 'v240', T0, 8, 16 * 3584, T1)
        A(f'{l}:')
        self.slice_src('v240', 1024)
        A(f's_mul_i32 {T0}, {G}, {224*1024}'); A(f's_lshl_b32 {T1}, {W}, 16'); A(f's_add_u32 {T0}, {T0}, {T1}'); A(f's_lshl_b32 {T1}, {R}, 6'); A(f's_add_u32 {T0}, {T0}, {T1}')
        A(f's_lshl_b32 {T1}, {W}, 12'); A(f's_add_u32 {T1}, {T1}, {W2_L}')
        l = self.lab('w2a'); l2 = self.lab('w2b')
        A(f's_cmp_eq_u32 {W}, 3'); A(f's_cbranch_scc1 {l}')
        self.dma_slices(sW2, 'v240', T0, 4, 16 * 1024, T1)
        A(f's_branch {l2}')
        A(f'{l}:')
        self.dma_slices(sW2, 'v240', T0, 2, 16 * 1024, T1)
        A(f'{l2}:')
        A('s_waitcnt vmcnt(0)'); A('s_barrier')
        self.stamp('late_landed')
        l = self.lab('nof1b'); A(f's_cmp_ge_u32 {R}, 14'); A(f's_cbranch_scc1 {l}')
        A(f's_lshl_b32 {T0}, {W}, 13'); A(f's_add_u32 {T0}, {T0}, {W_L}'); self.tr_addr('v241', 'v242', T0)
        self.tr_weights(WA, 4, 'v241', 'v242')
        for k in range(4): A(f'v_mov_b32 v{244+k}, 0x3f803f80')
        A('s_waitcnt lgkmcnt(0)')
        self.gemv_core(WA, RED_C, a=244)
        A(f'{l}:')
        l = self.lab('now2'); A(f's_cmp_ge_u32 {W}, 2'); A(f's_cbranch_scc1 {l}')
        A(f's_mov_b32 {T0}, {W2_L}'); self.tr_addr('v241', 'v242', T0)
        A(f's_lshl_b32 {T0}, {W}, 5'); A(f'v_xor_b32 v241, {T0}, v241')
        for t in range(7):
            A(f'ds_read_b64_tr_b16 {v(WB+4*t,2)}, v241 offset:{t*2048}'); A(f'ds_read_b64_tr_b16 {v(WB+4*t+2,2)}, v241 offset:{t*2048+256}')
        A('s_waitcnt lgkmcnt(0)')
        A(f'{l}:')

def emit(opt):
    k = K(opt); k.build()
    body = k.a.finalize()
    head = open('cdna_kernels/' + NAME + '.s.ref').read().split('; Override launch')[0]
    txt = head + f"""; Override launch geometry by editing the next line. Harness parses it; keep it on one line.
; @launch grid=(256,1,1) block=(256,1,1) lds={LDS_SIZE}
.amdgcn_target "amdgcn-amd-amdhsa--gfx950"
.text
.globl {NAME}_kernel
.p2align 8
.type {NAME}_kernel,@function
{NAME}_kernel:
{body}
.section .rodata,"a"
.p2align 6
.amdhsa_kernel {NAME}_kernel
  .amdhsa_next_free_vgpr 256
  .amdhsa_next_free_sgpr 102
  .amdhsa_accum_offset 256
  .amdhsa_group_segment_fixed_size 0
  .amdhsa_kernarg_size 96
  .amdhsa_user_sgpr_count 2
  .amdhsa_user_sgpr_kernarg_segment_ptr 1
  .amdhsa_system_sgpr_workgroup_id_x 1
  .amdhsa_float_denorm_mode_32 3
.end_amdhsa_kernel
"""
    return txt, k

def options(argv=None):
    p = argparse.ArgumentParser()
    p.add_argument('-o', default='cdna_kernels/' + NAME + '.s')
    p.add_argument('--stamps', action='store_true'); p.add_argument('--no-nt', dest='nt', action='store_false')
    p.add_argument('--force-slow', action='store_true'); p.add_argument('--d1', type=int, default=0); p.add_argument('--d2', type=int, default=0)
    return p.parse_args(argv)

if __name__ == '__main__':
    opt = options()
    txt, k = emit(opt)
    open(opt.o, 'w').write(txt)
    print('wrote', opt.o, 'instr', len(k.a.ins), 'nops inserted', k.a.inserted, 'stamps', k.stamp_names)
```

```python
import sys, os, argparse
sys.path.insert(0, os.path.dirname(os.path.abspath(__file__)))
from asmgen import Asm

NAME = 'interleave_layers__sliding_block_cached__glu_gated_swiglu__decode'

OFF_Q = 0x00000; OFF_O = 0x04000; OFF_X1 = 0x08000; OFF_GU = 0x0C000; OFF_X2 = 0x10000; OFF_ML = 0x14000
OFF_RS = 0x18000; OFF_C1 = 0x98000; OFF_C2 = 0xD8000; CLR0 = 0x2000; CLR_PER_CU = 5 * 1024
OFF_DIAG = 0x200000
V_L = 0; K_L = 32768; W_L = 65536; W2_L = 98304; DUM_L = 112640
RED_A = 113664; RED_B = 114176; RED_C = 114688; MX = 115200; PX = 115456; LX = 116480; HX = 116736
LDS_SIZE = 117760
G, J, W, R = 's4', 's5', 's6', 's7'
sX, sK, sV, sWQ, sWO, sW1, sW3, sW2, sOUT, sDBG, sWS, sWF = [f's[{40+4*k}:{43+4*k}]' for k in range(12)]
def srd_lo(k): return 40 + 4 * k
FAST, PASS, CNT = 's16', 's17', 's18'
T0, T1, T2, T3, T4 = 's19', 's20', 's21', 's22', 's23'
MGRP = 's[24:25]'
oQ, oRS, oML, oO, oC1, oX1, oGU, oC2, oX2 = 's26', 's27', 's28', 's29', 's30', 's31', 's32', 's33', 's34'
CEXP = 's35'; T5, T6, T7 = 's36', 's37', 's38'; OWN4 = 's39'
MASK4 = 's[8:9]'
SAVE = 's[10:11]'
L = 'v1'
vXF, vQ, vRSp, vRSg, vMLg, vOp, vCp, vCg, vXp, vPub, vRedW, vRedR, vPW, vPR = [f'v{k}' for k in range(2, 16)]
KF = 16; VF = 48; WA = 80; WB = 112; CS = 144
vMW, vMR, vLW, vLR, vGU, vHW, vHR, vMLp, vRES, vRedR4, vST = [f'v{k}' for k in range(146, 157)]
XF = 160; QB = 164; ACC = 180
def v(a, n=1): return f'v{a}' if n == 1 else f'v[{a}:{a+n-1}]'
MAXPOLL = 60000

class K:
    def __init__(self, opt):
        self.o = opt; self.a = Asm(); self.nlab = 0; self.nstamp = 0; self.stamp_names = []
        self.ld = 'nt' if opt.nt else ''
    def __call__(self, t): self.a(t)
    def lab(self, base):
        self.nlab += 1; return f'L_{base}_{self.nlab}'
    def stamp(self, name):
        if not self.o.stamps: return
        A = self; k = self.stamp_names.index(name) if name in self.stamp_names else None
        if k is None: self.stamp_names.append(name); k = len(self.stamp_names) - 1
        A('s_memrealtime s[88:89]'); A('s_waitcnt lgkmcnt(0)')
        A(f's_lshl_b32 s90, {PASS}, 5'); A(f's_add_u32 s90, s90, {k}'); A('s_mov_b32 m0, s90')
        A(f'v_writelane_b32 {vST}, s88, m0')
    def flush_stamps(self):
        if not self.o.stamps: return
        A = self
        A('s_mov_b64 exec, -1')
        A(f's_lshl_b32 s90, s2, 2'); A(f's_add_u32 s90, s90, {W}'); A('s_lshl_b32 s90, s90, 8'); A(f's_add_u32 s90, s90, {OFF_DIAG}')
        A(f'v_lshlrev_b32 v255, 2, {L}')
        A(f'buffer_store_dword {vST}, v255, {sWS}, s90 offen')
    def end(self):
        if self.o.spin:
            A = self; l = self.lab('spin'); d = self.lab('spind')
            A('s_mov_b32 s96, 0'); A(f'{l}:'); A('s_memrealtime s[94:95]'); A('s_waitcnt lgkmcnt(0)'); A('s_sub_u32 s94, s94, s92')
            A('s_add_u32 s96, s96, 1'); A('s_cmp_gt_u32 s96, 200000'); A(f's_cbranch_scc1 {d}')
            A(f's_cmp_lt_u32 s94, {self.o.spin}'); A(f's_cbranch_scc1 {l}'); A(f'{d}:')
        self.flush_stamps(); self('s_endpgm')

    def poll(self, loads, check, name, pre_wait=None, wait='vmcnt(0)'):
        A = self; lp = self.lab('poll_' + name)
        A(f's_mov_b32 {CNT}, 0')
        A(f'{lp}:')
        for t in loads: A(t)
        A(f's_add_u32 {CNT}, {CNT}, 1'); A(f's_cmp_gt_u32 {CNT}, {MAXPOLL}'); A('s_cbranch_scc1 L_bail')
        A(f's_waitcnt {wait}')
        check()
        A(f's_cbranch_vccnz {lp}')
    def chk_regs(self, regs, tmp):
        A = self; regs = list(regs)
        if len(regs) == 1:
            A(f'v_cmp_eq_u32 vcc, -1, v{regs[0]}'); return
        if len(regs) == 2:
            A(f'v_max_u32 v{tmp}, v{regs[0]}, v{regs[1]}'); rest = []
        else:
            A(f'v_max3_u32 v{tmp}, v{regs[0]}, v{regs[1]}, v{regs[2]}'); rest = regs[3:]
        while rest:
            if len(rest) >= 2: A(f'v_max3_u32 v{tmp}, v{tmp}, v{rest[0]}, v{rest[1]}'); rest = rest[2:]
            else: A(f'v_max_u32 v{tmp}, v{tmp}, v{rest[0]}'); rest = []
        A(f'v_cmp_eq_u32 vcc, -1, v{tmp}')
    def pub(self, text):
        A = self; ls = self.lab('slow'); ld = self.lab('pubd')
        A(f's_cmp_eq_u32 {FAST}, 0'); A(f's_cbranch_scc1 {ls}')
        A(text); A(f's_branch {ld}')
        A(f'{ls}:'); A(text + ' sc1'); A(f'{ld}:')

    def swap_red(self, op, r, t, which):
        A = self
        A(f'v_mov_b32 v{t}, v{r}'); A(f'v_permlane{which}_swap_b32 v{r}, v{t}'); A(f'{op} v{r}, v{r}, v{t}')
    def dpp(self, op, r, ror):
        self(f'{op}_dpp v{r}, v{r}, v{r} row_ror:{ror} row_mask:0xf bank_mask:0xf')

    def interleave(self, mf, va, per=3):
        va = list(va)
        for m in mf:
            self(m)
            for _ in range(per):
                if va: self(va.pop(0))
        for x in va: self(x)

    def gemv_core(self, WR, red, a=XF, stats=False):
        A = self
        D = lambda T, t: ACC + 16 * T + 4 * t
        mf = [f'v_mfma_f32_16x16x32_bf16 {v(D(T,t),4)}, {v(a,4)}, {v(WR+8*t+4*T,4)}, 0' for t in range(4) for T in range(2)]
        va = []
        S1, S2, TT = 212, 213, 214
        if stats:
            va.append(f'v_dot2_f32_bf16 v{S1}, v{a}, v221, 0'); va.append(f'v_dot2_f32_bf16 v{S2}, v{a}, v{a}, 0')
            for k in range(1, 4):
                va.append(f'v_dot2_f32_bf16 v{S1}, v{a+k}, v221, v{S1}'); va.append(f'v_dot2_f32_bf16 v{S2}, v{a+k}, v{a+k}, v{S2}')
            va += [f'v_permlane32_swap_b32 v{S1}, v{S2}', f'v_add_f32 v{S1}, v{S1}, v{S2}',
                   f'v_mov_b32 v{TT}, v{S1}', f'v_permlane16_swap_b32 v{S1}, v{TT}', f'v_add_f32 v{S1}, v{S1}, v{TT}']
            for ror in (8, 4, 2, 1): va.append(f'v_add_f32_dpp v{S1}, v{S1}, v{S1} row_ror:{ror} row_mask:0xf bank_mask:0xf')
            va += [f'v_mov_b32 v{S2}, v{S1}', f'v_permlane32_swap_b32 v{S1}, v{S2}',
                   f'v_mul_f32 v{S1}, 0x3b000000, v{S1}', f'v_mul_f32 v{S2}, 0x3b000000, v{S2}',
                   f'v_fma_f32 v{S2}, -v{S1}, v{S1}, v{S2}', f'v_max_f32 v{S2}, 0, v{S2}', f'v_add_f32 v{S2}, 0x3727c5ac, v{S2}',
                   f'v_rsq_f32 v{S2}, v{S2}']
            A('v_mov_b32 v221, 0x3f803f80')
        self.interleave(mf, va, per=3)
        P0, P1 = 216, 217
        for T, P in ((0, P0), (1, P1)):
            A(f'v_add_f32 v{P}, v{D(T,0)}, v{D(T,1)+1}'); A(f'v_add_f32 v{P+2}, v{D(T,2)+2}, v{D(T,3)+3}')
        for P in (P0, P1): A(f'v_add_f32 v{P}, v{P}, v{P+2}')
        if red != RED_A: A(f'v_add_u32 v215, {red-RED_A}, {vRedW}')
        A(f's_mov_b64 exec, {MGRP}')
        A(f'ds_write2_b32 {vRedW if red == RED_A else "v215"}, v{P0}, v{P1} offset0:0 offset1:16')
        A('s_mov_b64 exec, -1')

    def ln_finalize_publish(self, soff, pass0_cs):
        A = self
        for w in range(4): A(f'ds_read_b64 {v(224+2*w,2)}, {vRedR} offset:{w*128}')
        if pass0_cs:
            lc = self.lab('nocs')
            A(f's_cmp_lg_u32 {PASS}, 0'); A(f's_cbranch_scc1 {lc}')
            for w in range(4): A(f'ds_read_b64 {v(232+2*w,2)}, {vRedR} offset:{RED_C-RED_A+w*128}')
            A('s_waitcnt lgkmcnt(0)')
            for e in range(2):
                A(f'v_add_f32 v{232+e}, v{232+e}, v{234+e}'); A(f'v_add_f32 v{236+e}, v{236+e}, v{238+e}')
                A(f'v_add_f32 v{CS+e}, v{232+e}, v{236+e}')
            A(f'{lc}:')
        A('s_waitcnt lgkmcnt(0)')
        for e in range(2):
            A(f'v_add_f32 v{224+e}, v{224+e}, v{226+e}'); A(f'v_add_f32 v{228+e}, v{228+e}, v{230+e}')
        for e in range(2): A(f'v_add_f32 v{224+e}, v{224+e}, v{228+e}')
        for e in range(2): A(f'v_fma_f32 v{224+e}, -v212, v{CS+e}, v{224+e}')
        for e in range(2): A(f'v_mul_f32 v{224+e}, v213, v{224+e}')
        A('v_cvt_pk_bf16_f32 v224, v224, v225')
        A('s_mov_b64 exec, 0xffff')
        self.pub(f'buffer_store_dword v224, {vPub}, {sWS}, {soff} offen')
        A('s_mov_b64 exec, -1')

    def tr_weights(self, dst, nt, base_reg_T0, base_reg_T1):
        A = self
        for t in range(nt):
            for T, br in ((0, base_reg_T0), (1, base_reg_T1)):
                d = dst + 8 * t + 4 * T
                A(f'ds_read_b64_tr_b16 {v(d,2)}, {br} offset:{t*2048}')
                A(f'ds_read_b64_tr_b16 {v(d+2,2)}, {br} offset:{t*2048+256}')

    def tr_addr(self, d0, d1, base_sgpr_or_imm):
        A = self
        A(f'v_lshrrev_b32 v222, 4, {L}'); A(f'v_lshlrev_b32 v223, 9, v222')
        A('v_and_b32 v222, 1, v222'); A('v_lshlrev_b32 v222, 5, v222'); A('v_add_u32 v223, v223, v222')
        A(f'v_and_b32 v222, 12, {L}'); A('v_lshlrev_b32 v222, 4, v222'); A('v_add_u32 v223, v223, v222')
        A(f'v_and_b32 v222, 3, {L}'); A('v_lshlrev_b32 v222, 3, v222'); A('v_add_u32 v223, v223, v222')
        A(f'v_add_u32 {d0}, {base_sgpr_or_imm}, v223'); A(f'v_xor_b32 {d1}, 32, {d0}')

    def slice_src(self, dst, stride):
        A = self
        A(f'v_lshrrev_b32 v222, 5, {L}'); A('v_lshlrev_b32 v222, 1, v222'); A(f'v_and_b32 v223, 3, {L}'); A('v_xor_b32 v222, v222, v223')
        A('v_lshlrev_b32 v222, 4, v222'); A(f'v_lshrrev_b32 v223, 2, {L}')
        A(f'v_mul_u32_u24 v223, {stride}, v223'); A(f'v_add_u32 {dst}, v222, v223')

    def dma_slices(self, srd, vsrc, soff, n, step, lds_base_sgpr):
        A = self
        for k in range(n):
            if k % 4 == 0:
                if k == 0: A(f's_mov_b32 m0, {lds_base_sgpr}')
                else: A(f's_add_u32 m0, m0, 4096')
            A(f'buffer_load_dwordx4 {vsrc}, {srd}, {soff} offen offset:{(k%4)*1024} {self.ld} lds')
            if k + 1 < n:
                d = step - 1024 if (k % 4) != 3 else step + 3072
                A(f's_add_u32 {soff}, {soff}, {d}')

    def kv_issue(self):
        A = self
        A(f's_lshl_b32 {T0}, {G}, 23'); A(f's_lshl_b32 {T1}, {W}, 18'); A(f's_add_u32 {T0}, {T0}, {T1}')
        A(f's_lshl_b32 {T1}, {J}, 12'); A(f's_add_u32 {T0}, {T0}, {T1}'); A(f's_add_u32 {T0}, {T0}, {28672*256}')
        A(f's_lshl_b32 {T2}, {W}, 13')
        A(f'v_lshrrev_b32 v222, 4, {L}'); A('v_lshlrev_b32 v223, 1, v222'); A(f'v_and_b32 v224, 15, {L}'); A('v_xor_b32 v223, v223, v224')
        A('v_lshlrev_b32 v223, 4, v223'); A('v_lshlrev_b32 v225, 8, v222'); A('v_add_u32 v226, v223, v225'); A('v_xor_b32 v227, 128, v226')
        A('v_xor_b32 v223, v222, v224'); A('v_lshlrev_b32 v223, 4, v223'); A('v_add_u32 v228, v223, v225')
        for n in range(1, 4): A(f'v_xor_b32 v{228+n}, {64*n}, v228')
        for T in range(2):
            A(f's_add_u32 m0, {T2}, {V_L + T*4096}')
            if T: A(f's_add_u32 {T1}, {T0}, 131072')
            so = T1 if T else T0
            for n in range(4): A(f'buffer_load_dwordx4 v{226+(n&1)}, {sV}, {so} offen offset:{n*1024} {self.ld} lds')
        for T in range(2):
            A(f's_add_u32 m0, {T2}, {K_L + T*4096}')
            so = T1 if T else T0
            for n in range(4): A(f'buffer_load_dwordx4 v{228+n}, {sK}, {so} offen offset:{n*1024} {self.ld} lds')

    def v_frags(self):
        A = self
        A(f'v_lshrrev_b32 v222, 4, {L}'); A('v_lshlrev_b32 v222, 2, v222'); A(f'v_bfe_u32 v223, {L}, 2, 2'); A('v_add_u32 v222, v222, v223')
        A('v_and_b32 v223, 7, v222'); A(f's_lshl_b32 {T0}, {W}, 1'); A(f'v_xor_b32 v223, {T0}, v223'); A('v_lshlrev_b32 v223, 5, v223')
        A('v_lshlrev_b32 v222, 8, v222'); A('v_add_u32 v222, v222, v223'); A(f'v_and_b32 v223, 3, {L}'); A('v_lshlrev_b32 v223, 3, v223')
        A('v_add_u32 v222, v222, v223'); A('v_xor_b32 v223, 32, v222')
        for U in range(2):
            for w in range(4):
                d = VF + 16 * U + 4 * w
                A(f'ds_read_b64_tr_b16 {v(d,2)}, v{222+U} offset:{V_L + w*8192}')
                A(f'ds_read_b64_tr_b16 {v(d+2,2)}, v{222+U} offset:{V_L + w*8192 + 4096}')

    def k_frags(self):
        A = self
        A(f'v_and_b32 v224, 15, {L}'); A(f'v_lshrrev_b32 v225, 4, {L}'); A('v_xor_b32 v225, v225, v224'); A('v_lshlrev_b32 v225, 4, v225')
        A('v_lshlrev_b32 v224, 8, v224'); A(f's_lshl_b32 {T0}, {W}, 13'); A(f'v_add_u32 v224, {T0}, v224'); A('v_add_u32 v224, v224, v225')
        for t in range(1, 4): A(f'v_xor_b32 v{224+t}, {64*t}, v224')
        for T in range(2):
            for t in range(4): A(f'ds_read_b128 {v(KF+16*T+4*t,4)}, v{224+t} offset:{K_L + T*4096}')

    def q_loads(self): return [f'buffer_load_dwordx4 {v(QB+4*t,4)}, {vQ}, {sWS}, {oQ} offen offset:{64*t} sc1' for t in range(4)]

    def first_q(self, after_ok=None):
        A = self
        A('s_waitcnt vmcnt(8)'); A('s_barrier')
        self.stamp('V_landed')
        self.v_frags()
        A(f'v_lshlrev_b32 v240, 2, {L}')
        fl = f'buffer_load_dword v241, v240, {sDBG}, 0 offen sc1'
        A(fl)
        for t in self.q_loads(): A(t)
        A('s_waitcnt vmcnt(5)')
        self.stamp('K_landed')
        self.k_frags()
        lp = self.lab('q0'); lo = self.lab('q0ok')
        A(f's_mov_b32 {CNT}, 0')
        A(f'{lp}:')
        A('s_waitcnt vmcnt(0)')
        A('v_add_u32 v242, 0xfefefeff, v241'); A('v_not_b32 v243, v241'); A('v_and_b32 v242, v242, v243'); A('v_and_b32 v242, 0x80808080, v242')
        self.chk_regs(range(QB, QB + 16), 244)
        A('s_mov_b64 s[12:13], vcc')
        A('v_cmp_ne_u32 vcc, 0, v242'); A('s_or_b64 vcc, vcc, s[12:13]')
        A(f's_cbranch_vccz {lo}')
        A(fl)
        for t in self.q_loads(): A(t)
        A(f's_add_u32 {CNT}, {CNT}, 1'); A(f's_cmp_gt_u32 {CNT}, {MAXPOLL}'); A('s_cbranch_scc1 L_bail')
        A(f's_branch {lp}')
        A(f'{lo}:')
        A(f'v_cmp_ne_u32 vcc, {OWN4}, v241'); A(f's_lshl_b32 {T0}, {G}, 3'); A(f's_lshr_b64 s[12:13], vcc, {T0}'); A('s_and_b32 s12, s12, 0xff')
        A(f's_cmp_eq_u32 s12, 0'); A(f's_cselect_b32 {FAST}, 1, 0')
        if self.o.force_slow: A(f's_mov_b32 {FAST}, 0')
        A('s_waitcnt lgkmcnt(0)')

    def s2(self):
        A = self
        ST0, ST1, M, TT = 180, 184, 188, 189
        for t in range(4):
            for T, ST in ((0, ST0), (1, ST1)):
                A(f'v_mfma_f32_16x16x32_bf16 {v(ST,4)}, {v(KF+16*T+4*t,4)}, {v(QB+4*t,4)}, {v(ST,4) if t else 0}')
        A(f'v_max3_f32 v{M}, v{ST0}, v{ST0+1}, v{ST0+2}'); A(f'v_max3_f32 v{M}, v{M}, v{ST0+3}, v{ST1}')
        A(f'v_max3_f32 v{M}, v{M}, v{ST1+1}, v{ST1+2}'); A(f'v_max_f32 v{M}, v{M}, v{ST1+3}')
        self.swap_red('v_max_f32', M, TT, 16); self.swap_red('v_max_f32', M, TT, 32)
        A('s_mov_b64 exec, 15'); A(f'ds_write_b32 {vMW}, v{M}'); A('s_mov_b64 exec, -1')
        A('s_waitcnt lgkmcnt(0)'); A('s_barrier')
        A(f'ds_read_b128 {v(192,4)}, {vMR}'); A('s_waitcnt lgkmcnt(0)')
        A(f'v_max3_f32 v{M}, v192, v193, v194'); A(f'v_max_f32 v{M}, v{M}, v195'); A(f'v_mul_f32 v{M}, {CEXP}, v{M}')
        for k in range(8): A(f'v_fma_f32 v{ST0+k}, v{ST0+k}, {CEXP}, -v{M}')
        for k in range(8): A(f'v_exp_f32 v{ST0+k}, v{ST0+k}')
        for k in range(4): A(f'v_cvt_pk_bf16_f32 v{192+k}, v{ST0+2*k}, v{ST0+2*k+1}')
        A(f'v_add_f32 v{TT}, v{ST0}, v{ST0+1}'); A(f'v_add_f32 v196, v{ST0+2}, v{ST0+3}'); A(f'v_add_f32 v197, v{ST0+4}, v{ST0+5}'); A(f'v_add_f32 v198, v{ST0+6}, v{ST0+7}')
        A(f'v_add_f32 v{TT}, v{TT}, v196'); A('v_add_f32 v197, v197, v198'); A(f'v_add_f32 v{TT}, v{TT}, v197')
        A(f's_mov_b64 exec, {MASK4}'); A(f'ds_write_b128 {vPW}, {v(192,4)}'); A(f'ds_write_b32 {vLW}, v{TT}'); A('s_mov_b64 exec, -1')
        A('s_waitcnt lgkmcnt(0)'); A('s_barrier')
        PB = 192
        for w in range(4): A(f'ds_read_b128 {v(PB+4*w,4)}, {vPR} offset:{w*256}')
        A(f'ds_read_b32 v190, {vLR}')
        A('s_waitcnt lgkmcnt(0)')
        OT0, OT1 = 208, 212
        mf = [f'v_mfma_f32_16x16x32_bf16 {v(OT,4)}, {v(VF+16*U+4*w,4)}, {v(PB+4*w,4)}, {v(OT,4) if w else 0}' for w in range(4) for U, OT in ((0, OT0), (1, OT1))]
        va = ['v_add_f32_dpp v190, v190, v190 row_ror:4 row_mask:0xf bank_mask:0xf', 'v_add_f32_dpp v190, v190, v190 row_ror:8 row_mask:0xf bank_mask:0xf',
              'v_mov_b32 v191, v190', 'v_permlane16_swap_b32 v190, v191', 'v_add_f32 v190, v190, v191',
              'v_mov_b32 v191, v190', 'v_permlane32_swap_b32 v190, v191', 'v_add_f32 v191, v190, v191', f'v_mov_b32 v190, v{M}']
        self.interleave(mf, va, per=2)
        lm = self.lab('noml')
        A(f's_cmp_lg_u32 {W}, 3'); A(f's_cbranch_scc1 {lm}')
        A('s_mov_b64 exec, 15'); self.pub(f'buffer_store_dwordx2 v[190:191], {vMLp}, {sWS}, {oML} offen'); A('s_mov_b64 exec, -1')
        A(f'{lm}:')
        for k in range(2):
            A(f'v_cvt_pk_bf16_f32 v{216+k}, v{OT0+2*k}, v{OT0+2*k+1}')
        for k in range(2):
            A(f'v_cvt_pk_bf16_f32 v{218+k}, v{OT1+2*k}, v{OT1+2*k+1}')
        A(f's_mov_b64 exec, {MASK4}'); self.pub(f'buffer_store_dwordx4 {v(216,4)}, {vRSp}, {sWS}, {oRS} offen'); A('s_mov_b64 exec, -1')

    def common_addr(self):
        A = self
        A(f'v_and_b32 v222, 15, {L}'); A(f'v_lshrrev_b32 v223, 4, {L}')
        A('v_lshlrev_b32 v224, 4, v223')
        A(f'v_lshlrev_b32 {vXF}, 6, v222'); A(f'v_add_u32 {vXF}, {vXF}, v224')
        A('v_and_b32 v225, 3, v222')
        A(f'v_lshlrev_b32 {vQ}, 8, v225'); A(f'v_add_u32 {vQ}, {vQ}, v224')
        A(f's_lshl_b32 {T0}, {W}, 11'); A(f's_lshl_b32 {T1}, {J}, 4'); A(f's_add_u32 {T0}, {T0}, {T1}')
        A(f'v_lshlrev_b32 {vRSp}, 13, v222'); A('v_lshlrev_b32 v226, 9, v223'); A(f'v_add3_u32 {vRSp}, {vRSp}, v226, {T0}')
        A(f's_lshl_b32 {T1}, {J}, 3'); A(f'v_lshlrev_b32 {vMLp}, 8, v225'); A(f'v_add_u32 {vMLp}, {T1}, {vMLp}')
        A(f's_lshl_b32 {T0}, {W}, 2'); A(f's_add_u32 {T0}, {T0}, {MX}'); A(f'v_lshlrev_b32 {vMW}, 4, v225'); A(f'v_add_u32 {vMW}, {T0}, {vMW}')
        A(f'v_lshlrev_b32 {vMR}, 4, v225'); A(f'v_add_u32 {vMR}, {MX}, {vMR}')
        A('v_lshlrev_b32 v226, 6, v225'); A('v_add_u32 v226, v226, v224')
        A(f'v_add_u32 {vPR}, {PX}, v226'); A(f's_lshl_b32 {T0}, {W}, 8'); A(f'v_add_u32 {vPW}, {T0}, {vPR}')
        A('v_lshlrev_b32 v227, 6, v225'); A('v_lshlrev_b32 v228, 2, v223'); A(f's_lshl_b32 {T0}, {W}, 4'); A(f's_add_u32 {T0}, {T0}, {LX}')
        A(f'v_add3_u32 {vLW}, v227, v228, {T0}')
        A(f'v_lshrrev_b32 v228, 2, {L}'); A('v_lshlrev_b32 v228, 2, v228'); A('v_add_u32 v228, v228, v227'); A(f'v_add_u32 {vLR}, {LX}, v228')
        A(f's_lshl_b32 {T0}, {W}, 7'); A(f's_add_u32 {T0}, {T0}, {RED_A}'); A(f'v_lshlrev_b32 {vRedW}, 2, v222'); A(f'v_add_u32 {vRedW}, {T0}, {vRedW}')
        A(f'v_lshlrev_b32 {vRedR}, 3, v222'); A(f'v_add_u32 {vRedR}, {RED_A}, {vRedR}')
        A(f's_lshl_b32 {T0}, {W}, 4'); A(f's_lshl_b64 {MGRP}, 0xffff, {T0}')
        A('s_mov_b32 s8, 0x000f000f'); A('s_mov_b32 s9, 0x000f000f')
        A(f's_mov_b32 {CEXP}, 0x3e0293ee')
        A(f's_lshl_b32 {T0}, {G}, 10')
        for r, off in ((oQ, OFF_Q), (oO, OFF_O), (oX1, OFF_X1), (oGU, OFF_GU), (oX2, OFF_X2), (oML, OFF_ML)): A(f's_add_u32 {r}, {T0}, {off}')
        A(f's_lshl_b32 {T0}, {G}, 15'); A(f's_add_u32 {oRS}, {T0}, {OFF_RS}')
        A(f's_mov_b32 {oC1}, {OFF_C1}'); A(f's_mov_b32 {oC2}, {OFF_C2}')

    def next_pass(self):
        A = self
        for r in (oQ, oO, oX1, oGU, oML): A(f's_add_u32 {r}, {r}, 8192')
        A(f's_add_u32 {oRS}, {oRS}, 262144'); A(f's_add_u32 {oC1}, {oC1}, 131072'); A(f's_add_u32 {oC2}, {oC2}, 262144')
        A(f's_mov_b32 {PASS}, 1')

    def clears_and_flag(self, is_w):
        A = self; l = self.lab('noclr')
        A(f's_cmp_lg_u32 {W}, 3'); A(f's_cbranch_scc1 {l}')
        for k in range(4): A(f'v_mov_b32 v{232+k}, -1')
        A(f's_mul_i32 {T0}, s2, {CLR_PER_CU}'); A(f's_add_u32 {T0}, {T0}, {CLR0}')
        A(f'v_lshlrev_b32 v236, 4, {L}')
        for k in range(5):
            if k == 4: A(f's_add_u32 {T0}, {T0}, 4096')
            A(f'buffer_store_dwordx4 {v(232,4)}, v236, {sWS}, {T0} offen offset:{(k%4)*1024} sc1')
        if is_w:
            A(f's_lshl_b32 {T0}, {G}, 10'); A(f's_lshl_b32 {T1}, {J}, 6'); A(f's_add_u32 {T0}, {T0}, {T1}')
            A('s_mov_b64 exec, 15'); A(f'buffer_store_dwordx4 {v(232,4)}, v236, {sWS}, {T0} offen sc1'); A('s_mov_b64 exec, -1')
        A(f'{l}:')
    def set_flag(self, younger):
        A = self; l = self.lab('noflag')
        A(f's_cmp_lg_u32 {W}, 3'); A(f's_cbranch_scc1 {l}')
        A(f's_waitcnt vmcnt({younger})')
        A(f's_lshl_b32 {T0}, {G}, 5'); A(f's_add_u32 {T0}, {T0}, {J}')
        A(f's_and_b32 {T1}, {OWN4}, 0xff'); A(f'v_mov_b32 v237, {T1}'); A('v_mov_b32 v238, 0')
        A('s_mov_b64 exec, 1'); A(f'buffer_store_byte v237, v238, {sDBG}, {T0} offen sc1'); A('s_mov_b64 exec, -1')
        A(f'{l}:')
    def qpre(self):
        A = self
        A(f's_lshl_b32 {T0}, {J}, 17'); A(f's_lshl_b32 {T1}, {W}, 15'); A(f's_add_u32 {T0}, {T0}, {T1}'); A(f's_lshl_b32 {T1}, {G}, 10'); A(f's_add_u32 {T0}, {T0}, {T1}')
        A(f'v_lshlrev_b32 v239, 4, {L}'); A(f's_mov_b32 m0, {DUM_L}')
        for k in range(4):
            A(f'buffer_load_dwordx4 v239, {sWQ}, {T0} offen {self.ld} lds')
            if k < 3: A(f's_add_u32 {T0}, {T0}, 8192')

    def build(self):
        A = self
        A('s_cmp_ge_u32 s2, 256'); A('s_cbranch_scc1 L_exit')
        if self.o.stamps or self.o.spin: A('s_memrealtime s[92:93]')
        for k, off in ((3, 24), (10, 88), (2, 16), (1, 8), (0, 0), (9, 80)): A(f's_load_dwordx2 s[{srd_lo(k)}:{srd_lo(k)+1}], s[0:1], {off}')
        A(f'v_and_b32 {L}, 63, v0'); A('v_lshrrev_b32 v222, 6, v0'); A(f'v_readfirstlane_b32 {W}, v222')
        A(f's_and_b32 {G}, s2, 7'); A(f's_lshr_b32 {J}, s2, 3'); A(f's_and_b32 {R}, {J}, 15')
        sizes = {0: 1024, 1: 0x4000000, 2: 0x4000000, 3: 0x400000, 4: 0x400000, 5: 1835008, 6: 1835008, 7: 1835008, 8: 1024, 9: 256, 10: 0x10000000}
        for k, sz in sizes.items():
            A(f's_mov_b32 s{srd_lo(k)+2}, {sz}'); A(f's_mov_b32 s{srd_lo(k)+3}, 0x20000')
        A(f's_getreg_b32 {T0}, hwreg(HW_REG_XCC_ID, 0, 4)'); A(f's_add_u32 {T0}, {T0}, 1'); A(f's_mul_i32 {OWN4}, {T0}, 0x01010101')
        A(f's_mov_b32 {FAST}, 0'); A(f's_mov_b32 {PASS}, 0')
        if self.o.stamps: A(f'v_mov_b32 {vST}, 0')
        A('s_waitcnt lgkmcnt(0)')
        if self.o.stamps:
            A('s_mov_b32 m0, 63'); A(f'v_writelane_b32 {vST}, s92, m0')
        for k, off in ((4, 32), (5, 48), (6, 56), (7, 64), (8, 72)): A(f's_load_dwordx2 s[{srd_lo(k)}:{srd_lo(k)+1}], s[0:1], {off}')
        A(f's_cmp_ge_u32 {J}, 16'); A('s_cbranch_scc1 L_F')
        self.build_w()
        self.build_f()
        A('L_bail:')
        self.end()
        A('L_exit:'); A('s_endpgm')

    def build_w(self):
        A = self
        self.clears_and_flag(True)
        self.qpre()
        self.set_flag(4)
        self.common_addr()
        A(f'v_and_b32 v222, 7, {L}'); A('v_lshlrev_b32 v222, 3, v222'); A(f'v_lshrrev_b32 v223, 5, {L}'); A('v_lshlrev_b32 v223, 2, v223')
        A(f's_lshl_b32 {T0}, {R}, 6'); A(f'v_add3_u32 {vXp}, v222, v223, {T0}')
        A(f'buffer_load_dwordx4 {v(XF,4)}, {vXF}, {sX}, 0 offen'); A(f'buffer_load_dword {vRES}, {vXp}, {sX}, 0 offen')
        self.slice_src('v240', 8192)
        A(f's_lshl_b32 {T0}, {W}, 20'); A(f's_lshl_b32 {T1}, {G}, 10'); A(f's_add_u32 {T0}, {T0}, {T1}'); A(f's_lshl_b32 {T1}, {R}, 6'); A(f's_add_u32 {T0}, {T0}, {T1}')
        A(f's_lshl_b32 {T1}, {W}, 13'); A(f's_add_u32 {T1}, {T1}, {W_L}')
        self.dma_slices(sWQ, 'v240', T0, 8, 16 * 8192, T1)
        self.kv_issue()
        A(f'v_and_b32 v222, 31, {L}'); A(f'v_lshrrev_b32 v223, 5, {L}')
        A(f's_lshl_b32 {T0}, {R}, 11'); A(f's_lshl_b32 {T1}, {W}, 9'); A(f's_add_u32 {T0}, {T0}, {T1}')
        A(f'v_lshlrev_b32 {vRSg}, 4, v222'); A('v_lshlrev_b32 v224, 3, v223'); A(f'v_add3_u32 {vRSg}, {vRSg}, v224, {T0}')
        A(f's_lshr_b32 {T0}, {R}, 2'); A(f's_lshl_b32 {T0}, {T0}, 8'); A(f'v_lshlrev_b32 {vMLg}, 3, v222'); A(f'v_add_u32 {vMLg}, {T0}, {vMLg}')
        A(f's_lshl_b32 {T0}, {R}, 6'); A(f's_lshl_b32 {T1}, {W}, 3'); A(f's_add_u32 {T0}, {T0}, {T1}')
        A('v_lshlrev_b32 v224, 5, v223'); A(f'v_bfe_u32 v225, {L}, 4, 1'); A('v_lshlrev_b32 v225, 2, v225'); A(f'v_add3_u32 {vOp}, v224, v225, {T0}')
        A(f'v_lshrrev_b32 v223, 3, {L}'); A(f'v_and_b32 v224, 7, {L}'); A('v_lshlrev_b32 v224, 4, v224')
        A(f's_lshl_b32 {T0}, {R}, 10'); A(f's_lshl_b32 {T1}, {G}, 7'); A(f's_add_u32 {T1}, {T1}, {T0}')
        A('v_lshlrev_b32 v225, 14, v223'); A(f'v_add3_u32 {vCp}, v225, v224, {T1}')
        A(f's_lshl_b32 {T1}, {G}, 14'); A(f's_add_u32 {T1}, {T1}, {T0}'); A('v_lshlrev_b32 v225, 7, v223'); A(f'v_add3_u32 {vCg}, v225, v224, {T1}')
        A(f'v_add_u32 {vRedR4}, {RED_B}, v224')
        A(f'v_and_b32 v222, 15, {L}'); A('v_lshlrev_b32 v222, 2, v222'); A(f's_lshl_b32 {T0}, {R}, 6'); A(f'v_add_u32 {vPub}, {T0}, v222')
        A(f's_lshl_b32 {T0}, {W}, 13'); A(f's_add_u32 {T0}, {T0}, {W_L}'); self.tr_addr('v241', 'v242', T0)
        A('s_waitcnt vmcnt(16)')
        self.stamp('wq_landed')
        self.tr_weights(WA, 4, 'v241', 'v242')
        for k in range(4): A(f'v_mov_b32 v{244+k}, 0x3f803f80')
        A('s_waitcnt lgkmcnt(0)')
        self.gemv_core(WA, RED_C, a=244)
        A('s_branch L_W_S1')
        A('L_W_NEXT:')
        self.poll([f'buffer_load_dwordx4 {v(XF,4)}, {vXF}, {sWS}, {oX2} offen sc1', f'buffer_load_dword {vRES}, {vXp}, {sWS}, {oX2} offen sc1'],
                  lambda: (A(f'v_max_u32 v220, v{XF}, {vRES}'), A(f'v_max3_u32 v220, v220, v{XF+1}, v{XF+2}'), A(f'v_max_u32 v220, v220, v{XF+3}'), A('v_cmp_eq_u32 vcc, -1, v220')), 'x2')
        self.stamp('x_ok')
        A('L_W_S1:')
        self.gemv_core(WA, RED_A, stats=True)
        A('s_waitcnt lgkmcnt(0)'); A('s_barrier')
        l = self.lab('s1w'); A(f's_cmp_lg_u32 {W}, 0'); A(f's_cbranch_scc1 {l}')
        self.ln_finalize_publish(oQ, True)
        A(f'{l}:')
        self.stamp('q_pub')
        l1 = self.lab('p1q'); l2 = self.lab('s2')
        A(f's_cmp_lg_u32 {PASS}, 0'); A(f's_cbranch_scc1 {l1}')
        self.first_q()
        A(f's_branch {l2}')
        A(f'{l1}:')
        self.poll(self.q_loads(), lambda: self.chk_regs(range(QB, QB + 16), 244), 'q')
        A(f'{l2}:')
        self.stamp('q_ok')
        self.s2()
        self.stamp('rs_pub')
        self.poll([f'buffer_load_dwordx2 v[164:165], {vRSg}, {sWS}, {oRS} offen sc1', f'buffer_load_dwordx2 v[166:167], {vMLg}, {sWS}, {oML} offen sc1'],
                  lambda: self.chk_regs([164, 165, 166, 167], 220), 'rs')
        self.stamp('rs_ok')
        l = self.lab('wo0'); A(f's_cmp_lg_u32 {PASS}, 0'); A(f's_cbranch_scc1 {l}')
        self.slice_src('v240', 1024)
        A(f's_lshl_b32 {T0}, {G}, 19'); A(f's_lshl_b32 {T1}, {W}, 17'); A(f's_add_u32 {T0}, {T0}, {T1}'); A(f's_lshl_b32 {T1}, {R}, 6'); A(f's_add_u32 {T0}, {T0}, {T1}')
        A(f's_lshl_b32 {T1}, {W}, 13'); A(f's_add_u32 {T1}, {T1}, {W_L}')
        A('s_waitcnt lgkmcnt(0)')
        self.dma_slices(sWO, 'v240', T0, 8, 16 * 1024, T1)
        A(f'{l}:')
        M, TT, Wt, Lr = 168, 169, 170, 171
        A(f'v_max_f32_dpp v{M}, v166, v166 row_ror:1 row_mask:0xf bank_mask:0xf')
        A('v_lshlrev_b32 v172, 16, v164'); A('v_and_b32 v173, 0xffff0000, v164')
        self.dpp('v_max_f32', M, 2)
        A('v_lshlrev_b32 v174, 16, v165'); A('v_and_b32 v175, 0xffff0000, v165')
        self.dpp('v_max_f32', M, 4); self.dpp('v_max_f32', M, 8)
        self.swap_red('v_max_f32', M, TT, 16)
        A(f'v_sub_f32 v{Wt}, v166, v{M}'); A(f'v_exp_f32 v{Wt}, v{Wt}')
        for k in range(4): A(f'v_mul_f32 v{172+k}, v{Wt}, v{172+k}')
        A(f'v_mul_f32 v{Lr}, v{Wt}, v167')
        A('v_permlane16_swap_b32 v172, v174'); A('v_permlane16_swap_b32 v173, v175')
        A(f'v_mov_b32 v{TT}, v{Lr}'); A('v_add_f32 v172, v172, v174'); A('v_add_f32 v173, v173, v175')
        A(f'v_permlane16_swap_b32 v{Lr}, v{TT}'); A(f'v_add_f32 v{Lr}, v{Lr}, v{TT}')
        for ror in (8, 4, 2, 1):
            self.dpp('v_add_f32', Lr, ror); self.dpp('v_add_f32', 172, ror); self.dpp('v_add_f32', 173, ror)
        A(f'v_rcp_f32 v{Lr}, v{Lr}'); A(f'v_mul_f32 v172, v{Lr}, v172'); A(f'v_mul_f32 v173, v{Lr}, v173')
        A('v_cvt_pk_bf16_f32 v172, v172, v173')
        A('s_mov_b32 exec_lo, 0x00010001'); A('s_mov_b32 exec_hi, 0x00010001')
        self.pub(f'buffer_store_dword v172, {vOp}, {sWS}, {oO} offen')
        A('s_mov_b64 exec, -1')
        self.stamp('o_pub')
        self.poll([f'buffer_load_dwordx4 {v(XF,4)}, {vXF}, {sWS}, {oO} offen sc1'], lambda: self.chk_regs(range(XF, XF + 4), 220), 'o')
        self.stamp('o_ok')
        l = self.lab('wo1'); A(f's_cmp_lg_u32 {PASS}, 0'); A(f's_cbranch_scc1 {l}')
        A(f's_lshl_b32 {T0}, {W}, 13'); A(f's_add_u32 {T0}, {T0}, {W_L}'); self.tr_addr('v241', 'v242', T0)
        self.tr_weights(WB, 4, 'v241', 'v242')
        A('s_waitcnt lgkmcnt(0)')
        A(f'{l}:')
        self.gemv_core(WB, RED_B)
        A('s_waitcnt lgkmcnt(0)'); A('s_barrier')
        l5 = self.lab('w_s5'); A(f's_cmp_lg_u32 {W}, 0'); A(f's_cbranch_scc1 {l5}')
        for w in range(4): A(f'ds_read_b128 {v(224+4*w,4)}, {vRedR4} offset:{w*128}')
        A('s_waitcnt lgkmcnt(0)')
        for e in range(4):
            A(f'v_add_f32 v{224+e}, v{224+e}, v{228+e}'); A(f'v_add_f32 v{232+e}, v{232+e}, v{236+e}')
        for e in range(4): A(f'v_add_f32 v{224+e}, v{224+e}, v{232+e}')
        A(f'buffer_store_dwordx4 {v(224,4)}, {vCp}, {sWS}, {oC1} offen sc1')
        self.stamp('c1_pub')
        self.delay(self.o.d1)
        self.poll([f'buffer_load_dwordx4 {v(164,4)}, {vCg}, {sWS}, {oC1} offen sc1'], lambda: self.chk_regs(range(164, 168), 220), 'c1')
        self.stamp('c1_ok')
        A('v_permlane32_swap_b32 v164, v166'); A('v_permlane32_swap_b32 v165, v167')
        A('v_add_f32 v164, v164, v166'); A('v_add_f32 v165, v165, v167')
        A('v_mov_b32 v168, v164'); A('v_mov_b32 v169, v165')
        A('v_permlane16_swap_b32 v164, v168'); A('v_permlane16_swap_b32 v165, v169')
        A('v_add_f32 v164, v164, v168'); A('v_add_f32 v165, v165, v169')
        self.dpp('v_add_f32', 164, 8); self.dpp('v_add_f32', 165, 8)
        A(f'v_lshlrev_b32 v168, 16, {vRES}'); A(f'v_and_b32 v169, 0xffff0000, {vRES}')
        A('v_add_f32 v164, v164, v168'); A('v_add_f32 v165, v165, v169')
        A('v_cvt_pk_bf16_f32 v164, v164, v165')
        A('s_mov_b32 exec_lo, 0xff'); A('s_mov_b32 exec_hi, 0xff')
        self.pub(f'buffer_store_dword v164, {vXp}, {sWS}, {oX1} offen')
        A('s_mov_b64 exec, -1')
        self.stamp('x1_pub')
        A(f'{l5}:')
        A(f's_cmp_lg_u32 {PASS}, 0'); A('s_cbranch_scc1 L_W_END')
        self.next_pass()
        A('s_branch L_W_NEXT')
        A('L_W_END:')
        self.end()

    def delay(self, n):
        while n > 0:
            self(f's_nop {min(n,16)-1}'); n -= min(n, 16)

    def build_f(self):
        A = self
        A('L_F:')
        self.clears_and_flag(False)
        self.qpre()
        self.set_flag(4)
        self.kv_issue()
        self.common_addr()
        A(f'v_and_b32 v222, 15, {L}'); A(f'v_lshrrev_b32 v223, 4, {L}')
        A(f's_and_b32 {T0}, {R}, 1'); A(f's_lshl_b32 {T0}, {T0}, 9'); A(f's_lshr_b32 {T1}, {R}, 1'); A(f's_lshl_b32 {T1}, {T1}, 6'); A(f's_add_u32 {T0}, {T0}, {T1}')
        A('v_lshlrev_b32 v224, 2, v222'); A(f'v_add_u32 {vPub}, {T0}, v224')
        A(f's_lshl_b32 {T0}, {R}, 11'); A(f's_and_b32 {T1}, {W}, 1'); A(f's_lshl_b32 {T1}, {T1}, 10'); A(f's_add_u32 {T0}, {T0}, {T1}')
        A(f's_lshl_b32 {T1}, {G}, 7'); A(f's_add_u32 {T1}, {T1}, {T0}')
        A('v_lshlrev_b32 v225, 15, v223'); A(f'v_add3_u32 {vCp}, v225, v224, {T1}')
        A(f's_lshl_b32 {T1}, {G}, 15'); A(f's_add_u32 {T1}, {T1}, {T0}')
        A(f'v_lshrrev_b32 v225, 3, {L}'); A('v_lshlrev_b32 v225, 7, v225'); A(f'v_and_b32 v226, 7, {L}'); A('v_lshlrev_b32 v227, 3, v226')
        A(f'v_add3_u32 {vCg}, v225, v227, {T1}')
        A(f's_lshl_b32 {T0}, {R}, 6'); A(f's_and_b32 {T1}, {W}, 1'); A(f's_lshl_b32 {T1}, {T1}, 5'); A(f's_add_u32 {T0}, {T0}, {T1}')
        A('v_lshlrev_b32 v226, 2, v226'); A(f'v_add_u32 {vXp}, {T0}, v226')
        A(f'v_min_u32 {vGU}, 223, v0'); A(f'v_lshlrev_b32 {vGU}, 1, {vGU}')
        A(f'v_lshlrev_b32 {vHW}, 1, v0'); A(f'v_add_u32 {vHW}, {HX}, {vHW}')
        A('v_and_b32 v224, 3, v222'); A('v_lshlrev_b32 v224, 6, v224'); A('v_lshlrev_b32 v225, 4, v223'); A('v_add_u32 v224, v224, v225'); A(f'v_add_u32 {vHR}, {HX}, v224')
        self.first_q()
        A(f's_lshl_b32 {T0}, {G}, 19'); A(f's_lshl_b32 {T1}, {R}, 15'); A(f's_add_u32 {T0}, {T0}, {T1}'); A(f's_lshl_b32 {T1}, {W}, 13'); A(f's_add_u32 {T0}, {T0}, {T1}')
        A(f'v_lshlrev_b32 v239, 4, {L}'); A(f's_mov_b32 m0, {DUM_L}')
        for k in range(8):
            A(f'buffer_load_dwordx4 v239, {sWO}, {T0} offen {self.ld} lds')
            if k < 7: A(f's_add_u32 {T0}, {T0}, 1024')
        A('s_branch L_F_S2')
        A('L_F_NEXT:')
        self.poll(self.q_loads(), lambda: self.chk_regs(range(QB, QB + 16), 244), 'qf')
        A('L_F_S2:')
        self.stamp('q_ok')
        self.s2()
        self.stamp('rs_pub')
        l = self.lab('late'); A(f's_cmp_lg_u32 {PASS}, 0'); A(f's_cbranch_scc1 {l}')
        self.late_loads()
        A(f'{l}:')
        l6 = self.lab('nos6'); A(f's_cmp_ge_u32 {R}, 14'); A(f's_cbranch_scc1 {l6}')
        self.poll([f'buffer_load_dwordx4 {v(XF,4)}, {vXF}, {sWS}, {oX1} offen sc1'], lambda: self.chk_regs(range(XF, XF + 4), 220), 'x1')
        self.stamp('x1_ok')
        self.gemv_core(WA, RED_A, stats=True)
        A('s_waitcnt lgkmcnt(0)'); A('s_barrier')
        l = self.lab('s6w'); A(f's_cmp_lg_u32 {W}, 0'); A(f's_cbranch_scc1 {l}')
        self.ln_finalize_publish(oGU, True)
        A(f'{l}:')
        self.stamp('gu_pub')
        A(f'{l6}:')
        self.poll([f'buffer_load_ushort v164, {vGU}, {sWS}, {oGU} offen sc1', f'buffer_load_ushort v165, {vGU}, {sWS}, {oGU} offen offset:512 sc1',
                   f'buffer_load_dword {vRES}, {vXp}, {sWS}, {oX1} offen sc1'],
                  lambda: (A('v_max_u32 v166, v164, v165'), A('v_cmp_eq_u32 s[12:13], -1, ' + vRES), A('v_cmp_eq_u32 vcc, 0xffff, v166'), A('s_or_b64 vcc, vcc, s[12:13]')), 'gu')
        self.stamp('gu_ok')
        A('v_lshlrev_b32 v164, 16, v164'); A('v_lshlrev_b32 v165, 16, v165')
        A('v_mul_f32 v166, 0xbfb8aa3b, v164'); A('v_exp_f32 v166, v166'); A('v_add_f32 v166, 1.0, v166'); A('v_rcp_f32 v166, v166')
        A('v_mul_f32 v164, v164, v165'); A('v_mul_f32 v164, v164, v166'); A('v_cvt_pk_bf16_f32 v164, v164, v164')
        A(f'ds_write_b16 {vHW}, v164'); A('s_waitcnt lgkmcnt(0)'); A('s_barrier')
        A(f's_cmp_ge_u32 {W}, 2'); A('s_cbranch_scc1 L_F_TAIL')
        A(f'ds_read_b128 {v(164,4)}, {vHR}'); A(f'ds_read_b128 {v(168,4)}, {vHR} offset:256'); A('s_waitcnt lgkmcnt(0)')
        for r in range(4): A(f'v_mfma_f32_16x16x32_bf16 {v(ACC+4*r,4)}, {v(164,4)}, {v(WB+4*r,4)}, 0')
        for r in range(3): A(f'v_mfma_f32_16x16x32_bf16 {v(ACC+4*r,4)}, {v(168,4)}, {v(WB+16+4*r,4)}, {v(ACC+4*r,4)}')
        A(f'v_add_f32 v216, v{ACC}, v{ACC+5}'); A(f'v_add_f32 v217, v{ACC+10}, v{ACC+15}'); A('v_add_f32 v216, v216, v217')
        lp1 = self.lab('c2p1'); lp2 = self.lab('c2d')
        A(f's_cmp_lg_u32 {PASS}, 0'); A(f's_cbranch_scc1 {lp1}')
        A(f's_add_u32 {T0}, {oC2}, 131072')
        A(f'buffer_store_dword v216, {vCp}, {sWS}, {oC2} offen sc1'); A(f'buffer_store_dword v216, {vCp}, {sWS}, {T0} offen sc1')
        A(f's_branch {lp2}')
        A(f'{lp1}:')
        A('s_mov_b64 exec, 0xffff'); A(f'buffer_store_dword v216, {vCp}, {sWS}, {oC2} offen sc1'); A('s_mov_b64 exec, -1')
        self.stamp('c2_pub')
        A(f's_cmp_lg_u32 {G}, 0'); A('s_cbranch_scc1 L_F_END')
        A(f'{lp2}:')
        self.stamp('c2_pub')
        self.delay(self.o.d2)
        self.poll([f'buffer_load_dwordx2 v[164:165], {vCg}, {sWS}, {oC2} offen sc1'], lambda: self.chk_regs([164, 165], 220), 'c2')
        self.stamp('c2_ok')
        self.dpp('v_add_f32', 164, 8); self.dpp('v_add_f32', 165, 8)
        A('v_mov_b32 v168, v164'); A('v_mov_b32 v169, v165')
        A('v_permlane16_swap_b32 v164, v168'); A('v_permlane16_swap_b32 v165, v169')
        A('v_add_f32 v164, v164, v168'); A('v_add_f32 v165, v165, v169')
        A('v_mov_b32 v168, v164'); A('v_mov_b32 v169, v165')
        A('v_permlane32_swap_b32 v164, v168'); A('v_permlane32_swap_b32 v165, v169')
        A('v_add_f32 v164, v164, v168'); A('v_add_f32 v165, v165, v169')
        A(f'v_lshlrev_b32 v168, 16, {vRES}'); A(f'v_and_b32 v169, 0xffff0000, {vRES}')
        A('v_add_f32 v164, v164, v168'); A('v_add_f32 v165, v165, v169')
        A('v_cvt_pk_bf16_f32 v164, v164, v165')
        A('s_mov_b64 exec, 0xff')
        lo = self.lab('out'); A(f's_cmp_lg_u32 {PASS}, 0'); A(f's_cbranch_scc1 {lo}')
        self.pub(f'buffer_store_dword v164, {vXp}, {sWS}, {oX2} offen')
        A('s_mov_b64 exec, -1')
        self.stamp('x2_pub')
        A('L_F_TAIL:')
        A(f's_cmp_lg_u32 {PASS}, 0'); A('s_cbranch_scc1 L_F_END')
        self.next_pass()
        A('s_branch L_F_NEXT')
        A(f'{lo}:')
        A(f'buffer_store_dword v164, {vXp}, {sOUT}, 0 offen')
        A('s_mov_b64 exec, -1')
        self.stamp('x2_pub')
        A('L_F_END:')
        self.end()

    def late_loads(self):
        A = self
        A('s_waitcnt lgkmcnt(0)')
        A(f's_lshl_b32 {T2}, {R}, 2'); A(f's_add_u32 {T2}, {T2}, {W}')
        A(f'v_min_u32 v222, 55, {L}'); A('v_mul_u32_u24 v223, 9363, v222'); A('v_lshrrev_b32 v223, 18, v223')
        A('v_mul_u32_u24 v224, 28, v223'); A('v_sub_u32 v224, v222, v224'); A('v_lshlrev_b32 v224, 4, v224')
        A('v_mul_u32_u24 v223, 3584, v223'); A('v_add_u32 v239, v223, v224')
        A(f's_mul_i32 {T0}, {T2}, {8*3584}'); A(f's_mul_i32 {T1}, {G}, 448'); A(f's_add_u32 {T0}, {T0}, {T1}')
        A(f's_mov_b32 m0, {DUM_L}')
        for k in range(4):
            A(f'buffer_load_dwordx4 v239, {sW1}, {T0} offen {self.ld} lds'); A(f'buffer_load_dwordx4 v239, {sW3}, {T0} offen {self.ld} lds')
            if k < 3: A(f's_add_u32 {T0}, {T0}, {2*3584}')
        A(f's_mul_i32 {T0}, {G}, {224*1024}'); A(f's_mul_i32 {T1}, {T2}, 3584'); A(f's_add_u32 {T0}, {T0}, {T1}')
        A(f'v_lshlrev_b32 v239, 4, {L}')
        for k in range(4):
            if k == 3: A('s_mov_b32 exec_hi, 0')
            A(f'buffer_load_dwordx4 v239, {sW2}, {T0} offen {self.ld} lds')
            if k < 3: A(f's_add_u32 {T0}, {T0}, 1024')
        A('s_mov_b64 exec, -1')
        A('s_waitcnt vmcnt(0)')
        self.stamp('late_pre')
        A(f's_and_b32 {T0}, {R}, 1'); A(f's_cmp_eq_u32 {T0}, 0')
        A('s_cselect_b32 s84, s60, s64'); A('s_cselect_b32 s85, s61, s65'); A('s_mov_b32 s86, 1835008'); A('s_mov_b32 s87, 0x20000')
        l = self.lab('nof1'); A(f's_cmp_ge_u32 {R}, 14'); A(f's_cbranch_scc1 {l}')
        self.slice_src('v240', 3584)
        A(f's_mul_i32 {T0}, {W}, {128*3584}'); A(f's_mul_i32 {T1}, {G}, 448'); A(f's_add_u32 {T0}, {T0}, {T1}')
        A(f's_lshr_b32 {T1}, {R}, 1'); A(f's_lshl_b32 {T1}, {T1}, 6'); A(f's_add_u32 {T0}, {T0}, {T1}')
        A(f's_lshl_b32 {T1}, {W}, 13'); A(f's_add_u32 {T1}, {T1}, {W_L}')
        self.dma_slices(sWF, 'v240', T0, 8, 16 * 3584, T1)
        A(f'{l}:')
        self.slice_src('v240', 1024)
        A(f's_mul_i32 {T0}, {G}, {224*1024}'); A(f's_lshl_b32 {T1}, {W}, 16'); A(f's_add_u32 {T0}, {T0}, {T1}'); A(f's_lshl_b32 {T1}, {R}, 6'); A(f's_add_u32 {T0}, {T0}, {T1}')
        A(f's_lshl_b32 {T1}, {W}, 12'); A(f's_add_u32 {T1}, {T1}, {W2_L}')
        l = self.lab('w2a'); l2 = self.lab('w2b')
        A(f's_cmp_eq_u32 {W}, 3'); A(f's_cbranch_scc1 {l}')
        self.dma_slices(sW2, 'v240', T0, 4, 16 * 1024, T1)
        A(f's_branch {l2}')
        A(f'{l}:')
        self.dma_slices(sW2, 'v240', T0, 2, 16 * 1024, T1)
        A(f'{l2}:')
        A('s_waitcnt vmcnt(0)'); A('s_barrier')
        self.stamp('late_landed')
        l = self.lab('nof1b'); A(f's_cmp_ge_u32 {R}, 14'); A(f's_cbranch_scc1 {l}')
        A(f's_lshl_b32 {T0}, {W}, 13'); A(f's_add_u32 {T0}, {T0}, {W_L}'); self.tr_addr('v241', 'v242', T0)
        self.tr_weights(WA, 4, 'v241', 'v242')
        for k in range(4): A(f'v_mov_b32 v{244+k}, 0x3f803f80')
        A('s_waitcnt lgkmcnt(0)')
        self.gemv_core(WA, RED_C, a=244)
        A(f'{l}:')
        l = self.lab('now2'); A(f's_cmp_ge_u32 {W}, 2'); A(f's_cbranch_scc1 {l}')
        A(f's_mov_b32 {T0}, {W2_L}'); self.tr_addr('v241', 'v242', T0)
        A(f's_lshl_b32 {T0}, {W}, 5'); A(f'v_xor_b32 v241, {T0}, v241')
        for t in range(7):
            A(f'ds_read_b64_tr_b16 {v(WB+4*t,2)}, v241 offset:{t*2048}'); A(f'ds_read_b64_tr_b16 {v(WB+4*t+2,2)}, v241 offset:{t*2048+256}')
        A('s_waitcnt lgkmcnt(0)')
        A(f'{l}:')

def emit(opt):
    k = K(opt); k.build()
    body = k.a.finalize()
    head = open('cdna_kernels/' + NAME + '.s.ref').read().split('; Override launch')[0]
    txt = head + f"""; Override launch geometry by editing the next line. Harness parses it; keep it on one line.
; @launch grid=(256,1,1) block=(256,1,1) lds={LDS_SIZE}
.amdgcn_target "amdgcn-amd-amdhsa--gfx950"
.text
.globl {NAME}_kernel
.p2align 8
.type {NAME}_kernel,@function
{NAME}_kernel:
{body}
.section .rodata,"a"
.p2align 6
.amdhsa_kernel {NAME}_kernel
  .amdhsa_next_free_vgpr 256
  .amdhsa_next_free_sgpr 102
  .amdhsa_accum_offset 256
  .amdhsa_group_segment_fixed_size 0
  .amdhsa_kernarg_size 96
  .amdhsa_user_sgpr_count 2
  .amdhsa_user_sgpr_kernarg_segment_ptr 1
  .amdhsa_system_sgpr_workgroup_id_x 1
  .amdhsa_float_denorm_mode_32 3
.end_amdhsa_kernel
"""
    return txt, k

def options(argv=None):
    p = argparse.ArgumentParser()
    p.add_argument('-o', default='cdna_kernels/' + NAME + '.s')
    p.add_argument('--stamps', action='store_true'); p.add_argument('--no-nt', dest='nt', action='store_false')
    p.add_argument('--spin', type=int, default=0); p.add_argument('--force-slow', action='store_true'); p.add_argument('--d1', type=int, default=0); p.add_argument('--d2', type=int, default=0)
    return p.parse_args(argv)

if __name__ == '__main__':
    opt = options()
    txt, k = emit(opt)
    open(opt.o, 'w').write(txt)
    print('wrote', opt.o, 'instr', len(k.a.ins), 'nops inserted', k.a.inserted, 'stamps', k.stamp_names)
```

```python
import sys, os, argparse
sys.path.insert(0, os.path.dirname(os.path.abspath(__file__)))
from asmgen import Asm

NAME = 'interleave_layers__sliding_block_cached__glu_gated_swiglu__decode'

OFF_Q = 0x00000; OFF_O = 0x04000; OFF_X1 = 0x08000; OFF_GU = 0x0C000; OFF_X2 = 0x10000; OFF_EPOCH = 0x13000; OFF_ML = 0x14000
OFF_RS = 0x20000; OFF_C1 = 0x120000; OFF_C2 = 0x160000
OFF_DIAG = 0x200000
V_L = 0; K_L = 32768; W_L = 65536; W2_L = 98304; DUM_L = 114688
RED_A = 115712; RED_B = 116224; RED_C = 116736; MX = 117248; FX = 117376; PX = 117504; LX = 118528; HX = 118784; QX = 119296
LDS_SIZE = 120832
G, J, W, R = 's4', 's5', 's6', 's7'
sX, sK, sV, sWQ, sWO, sW1, sW3, sW2, sOUT, sDBG, sWS, sWF = [f's[{40+4*k}:{43+4*k}]' for k in range(12)]
def srd_lo(k): return 40 + 4 * k
FAST, PASS, CNT = 's16', 's17', 's18'
T0, T1, T2, T3, T4 = 's19', 's20', 's21', 's22', 's23'
MGRP = 's[24:25]'
oQ, oRS, oML, oO, oC1, oX1, oGU, oC2, oX2 = 's26', 's27', 's28', 's29', 's30', 's31', 's32', 's33', 's34'
CEXP = 's35'; OWN4 = 's39'
MASK4 = 's[8:9]'
TAG32, MASK12 = 's14', 's15'
L = 'v1'
vXF, vGp, vRSp, vRSg, vMLg, vOp, vCp, vCg, vXp, vPub, vRedW, vRedR, vPW, vPR = [f'v{k}' for k in range(2, 16)]
KF = 16; VF = 48; WA = 80; WB = 112; CS = 144
vMW, vMR, vLW, vLR, vGU, vHW, vHR, vMLp, vRES, vRedR4 = [f'v{k}' for k in range(146, 156)]
MLQ = 156
XF = 160; QB = 164; ACC = 180
ONES = 240
vQXW, vLin, vC2p, vC2g, vX8p, vRES8, vTAG, vST, vQXR = 'v244', 'v245', 'v248', 'v249', 'v250', 'v251', 'v252', 'v253', 'v254'
def v(a, n=1): return f'v{a}' if n == 1 else f'v[{a}:{a+n-1}]'
MAXPOLL = 60000
SIZES = {0: 1024, 1: 0x4000000, 2: 0x4000000, 3: 0x400000, 4: 0x400000, 5: 1835008, 6: 1835008, 7: 1835008, 8: 1024, 9: 256, 10: 0x10000000}

class K:
    def __init__(self, opt):
        self.o = opt; self.a = Asm(); self.nlab = 0; self.stamp_names = []
        self.ld = 'nt' if opt.nt else ''
    def __call__(self, t): self.a(t)
    def lab(self, base):
        self.nlab += 1; return f'L_{base}_{self.nlab}'
    def stamp(self, name):
        A = self
        if self.o.probe == name:
            l = self.lab('probe'); A(f's_cmp_lg_u32 {PASS}, {self.o.probe_pass}'); A(f's_cbranch_scc1 {l}')
            A('s_memrealtime s[92:93]'); A('s_waitcnt lgkmcnt(0)'); A(f'{l}:')
        if not self.o.stamps: return
        if name not in self.stamp_names: self.stamp_names.append(name)
        k = self.stamp_names.index(name)
        A('s_memrealtime s[88:89]'); A('s_waitcnt lgkmcnt(0)')
        A(f's_lshl_b32 s90, {PASS}, 5'); A(f's_add_u32 s90, s90, {k}'); A('s_mov_b32 s91, m0'); A('s_mov_b32 m0, s90')
        A(f'v_writelane_b32 {vST}, s88, m0'); A('s_mov_b32 m0, s91')
    def flush_stamps(self):
        if not self.o.stamps: return
        A = self
        A('s_mov_b64 exec, -1')
        A(f's_lshl_b32 s90, s2, 2'); A(f's_add_u32 s90, s90, {W}'); A('s_lshl_b32 s90, s90, 8'); A(f's_add_u32 s90, s90, {OFF_DIAG}')
        A(f'v_lshlrev_b32 v255, 2, {L}')
        A(f'buffer_store_dword {vST}, v255, {sWS}, s90 offen')
    def end(self):
        if self.o.spin:
            A = self; l = self.lab('spin'); d = self.lab('spind')
            A('s_waitcnt lgkmcnt(0)')
            A('s_mov_b32 s96, 0'); A(f'{l}:'); A('s_memrealtime s[94:95]'); A('s_waitcnt lgkmcnt(0)'); A('s_sub_u32 s94, s94, s92')
            A('s_add_u32 s96, s96, 1'); A('s_cmp_gt_u32 s96, 200000'); A(f's_cbranch_scc1 {d}')
            A(f's_cmp_lt_u32 s94, {self.o.spin}'); A(f's_cbranch_scc1 {l}'); A(f'{d}:')
        self.flush_stamps(); self('s_endpgm')
    def delay(self, n):
        while n > 0:
            self(f's_nop {min(n,16)-1}'); n -= min(n, 16)

    def poll(self, loads, check, name, sleep=0):
        A = self; lp = self.lab('poll_' + name)
        A(f's_mov_b32 {CNT}, 0')
        A(f'{lp}:')
        for t in loads: A(t)
        A(f's_add_u32 {CNT}, {CNT}, 1'); A(f's_cmp_gt_u32 {CNT}, {MAXPOLL}'); A('s_cbranch_scc1 L_bail')
        A('s_waitcnt vmcnt(0)')
        check()
        if sleep:
            lo = self.lab('pok'); A(f's_cbranch_vccz {lo}'); A(f's_sleep {sleep}'); A(f's_branch {lp}'); A(f'{lo}:')
        else:
            A(f's_cbranch_vccnz {lp}')
    def chk_regs(self, regs, tmp):
        A = self; regs = list(regs)
        A(f'v_max3_u32 v{tmp}, v{regs[0]}, v{regs[1]}, v{regs[2]}'); rest = regs[3:]
        while rest:
            if len(rest) >= 2: A(f'v_max3_u32 v{tmp}, v{tmp}, v{rest[0]}, v{rest[1]}'); rest = rest[2:]
            else: A(f'v_max_u32 v{tmp}, v{tmp}, v{rest[0]}'); rest = []
        A(f'v_cmp_eq_u32 vcc, -1, v{tmp}')
    def chk_tag(self, regs, tmp):
        A = self; regs = list(regs)
        A(f'v_bitop3_b32 v{tmp}, v{regs[0]}, v{regs[1]}, {vTAG} bitop3:0x7e')
        if len(regs) == 4:
            A(f'v_bitop3_b32 v{tmp+1}, v{regs[2]}, v{regs[3]}, {vTAG} bitop3:0x7e')
            A(f'v_bitop3_b32 v{tmp}, v{tmp}, v{tmp+1}, {MASK12} bitop3:0xa8')
        else:
            A(f'v_and_b32 v{tmp}, {MASK12}, v{tmp}')
    def put_tag(self, r): self(f'v_bfi_b32 v{r}, {MASK12}, {vTAG}, v{r}')
    def strip_tag(self, r): self(f'v_and_b32 v{r}, 0xfffff000, v{r}')
    def pub(self, texts):
        A = self; ls = self.lab('slow'); ld = self.lab('pubd')
        if isinstance(texts, str): texts = [texts]
        A(f's_cmp_eq_u32 {FAST}, 0'); A(f's_cbranch_scc1 {ls}')
        for t in texts: A(t)
        A(f's_branch {ld}')
        A(f'{ls}:')
        for t in texts: A(t + ' sc1')
        A(f'{ld}:')

    def swap_red(self, op, r, t, which):
        A = self
        A(f'v_mov_b32 v{t}, v{r}'); A(f'v_permlane{which}_swap_b32 v{r}, v{t}'); A(f'{op} v{r}, v{r}, v{t}')
    def dpp(self, op, r, ror):
        self(f'{op}_dpp v{r}, v{r}, v{r} row_ror:{ror} row_mask:0xf bank_mask:0xf')
    def interleave(self, mf, va, per=3):
        va = list(va)
        for m in mf:
            self(m)
            for _ in range(per):
                if va: self(va.pop(0))
        for x in va: self(x)

    def gemv_core(self, WR, red, a=XF, stats=False):
        A = self
        D = lambda T, t: ACC + 16 * T + 4 * t
        mf = [f'v_mfma_f32_16x16x32_bf16 {v(D(T,t),4)}, {v(a,4)}, {v(WR+8*t+4*T,4)}, 0' for t in range(4) for T in range(2)]
        va = []
        S1, S2, TT = 212, 213, 214
        if stats:
            va.append(f'v_dot2_f32_bf16 v{S1}, v{a}, v221, 0'); va.append(f'v_dot2_f32_bf16 v{S2}, v{a}, v{a}, 0')
            for k in range(1, 4):
                va.append(f'v_dot2_f32_bf16 v{S1}, v{a+k}, v221, v{S1}'); va.append(f'v_dot2_f32_bf16 v{S2}, v{a+k}, v{a+k}, v{S2}')
            va += [f'v_permlane32_swap_b32 v{S1}, v{S2}', f'v_add_f32 v{S1}, v{S1}, v{S2}',
                   f'v_mov_b32 v{TT}, v{S1}', f'v_permlane16_swap_b32 v{S1}, v{TT}', f'v_add_f32 v{S1}, v{S1}, v{TT}']
            for ror in (8, 4, 2, 1): va.append(f'v_add_f32_dpp v{S1}, v{S1}, v{S1} row_ror:{ror} row_mask:0xf bank_mask:0xf')
            va += [f'v_mov_b32 v{S2}, v{S1}', f'v_permlane32_swap_b32 v{S1}, v{S2}',
                   f'v_mul_f32 v{S1}, 0x3b000000, v{S1}', f'v_mul_f32 v{S2}, 0x3b000000, v{S2}',
                   f'v_fma_f32 v{S2}, -v{S1}, v{S1}, v{S2}', f'v_max_f32 v{S2}, 0, v{S2}', f'v_add_f32 v{S2}, 0x3727c5ac, v{S2}',
                   f'v_rsq_f32 v{S2}, v{S2}']
            A('v_mov_b32 v221, 0x3f803f80')
        self.interleave(mf, va, per=3)
        P0, P1 = 216, 217
        for T, P in ((0, P0), (1, P1)):
            A(f'v_add_f32 v{P}, v{D(T,0)}, v{D(T,1)+1}'); A(f'v_add_f32 v{P+2}, v{D(T,2)+2}, v{D(T,3)+3}')
        for P in (P0, P1): A(f'v_add_f32 v{P}, v{P}, v{P+2}')
        if red != RED_A: A(f'v_add_u32 v215, {red-RED_A}, {vRedW}')
        A(f's_mov_b64 exec, {MGRP}')
        A(f'ds_write2_b32 {vRedW if red == RED_A else "v215"}, v{P0}, v{P1} offset0:0 offset1:16')
        A('s_mov_b64 exec, -1')
    def colsum(self):
        A = self
        for k in range(4): A(f'v_mov_b32 v{ONES+k}, 0x3f803f80')
        A('s_waitcnt lgkmcnt(0)')
        self.gemv_core(WA, RED_C, a=ONES)

    def ln_finalize_publish(self, soff):
        A = self
        for w in range(4): A(f'ds_read_b64 {v(224+2*w,2)}, {vRedR} offset:{w*128}')
        lc = self.lab('nocs')
        A(f's_cmp_lg_u32 {PASS}, 0'); A(f's_cbranch_scc1 {lc}')
        for w in range(4): A(f'ds_read_b64 {v(232+2*w,2)}, {vRedR} offset:{RED_C-RED_A+w*128}')
        A('s_waitcnt lgkmcnt(0)')
        for e in range(2):
            A(f'v_add_f32 v{232+e}, v{232+e}, v{234+e}'); A(f'v_add_f32 v{236+e}, v{236+e}, v{238+e}')
            A(f'v_add_f32 v{CS+e}, v{232+e}, v{236+e}')
        A(f'{lc}:')
        A('s_waitcnt lgkmcnt(0)')
        for e in range(2):
            A(f'v_add_f32 v{224+e}, v{224+e}, v{226+e}'); A(f'v_add_f32 v{228+e}, v{228+e}, v{230+e}')
        for e in range(2): A(f'v_add_f32 v{224+e}, v{224+e}, v{228+e}')
        for e in range(2): A(f'v_fma_f32 v{224+e}, -v212, v{CS+e}, v{224+e}')
        for e in range(2): A(f'v_mul_f32 v{224+e}, v213, v{224+e}')
        A('v_cvt_pk_bf16_f32 v224, v224, v225')
        A('s_mov_b64 exec, 0xffff')
        self.pub(f'buffer_store_dword v224, {vPub}, {sWS}, {soff} offen')
        A('s_mov_b64 exec, -1')

    def tr_weights(self, dst, nt, b0, b1):
        for t in range(nt):
            for T, br in ((0, b0), (1, b1)):
                d = dst + 8 * t + 4 * T
                self(f'ds_read_b64_tr_b16 {v(d,2)}, {br} offset:{t*2048}')
                self(f'ds_read_b64_tr_b16 {v(d+2,2)}, {br} offset:{t*2048+256}')
    def tr_addr(self, d0, d1, base):
        A = self
        A(f'v_lshrrev_b32 v222, 4, {L}'); A('v_lshlrev_b32 v223, 9, v222')
        A('v_and_b32 v222, 1, v222'); A('v_lshl_add_u32 v223, v222, 5, v223')
        A(f'v_and_b32 v222, 12, {L}'); A('v_lshl_add_u32 v223, v222, 4, v223')
        A(f'v_and_b32 v222, 3, {L}'); A('v_lshl_add_u32 v223, v222, 3, v223')
        A(f'v_add_u32 {d0}, {base}, v223'); A(f'v_xor_b32 {d1}, 32, {d0}')
    def load_wave_weights(self, dst):
        A = self
        A(f's_lshl_b32 {T0}, {W}, 13'); A(f's_add_u32 {T0}, {T0}, {W_L}'); self.tr_addr('v236', 'v237', T0)
        self.tr_weights(dst, 4, 'v236', 'v237')
    def slice_src(self, dst, stride):
        A = self
        A(f'v_lshrrev_b32 v222, 5, {L}'); A(f'v_and_b32 v223, 3, {L}'); A('v_lshlrev_b32 v222, 1, v222'); A('v_xor_b32 v222, v222, v223')
        A(f'v_lshrrev_b32 v223, 2, {L}'); A(f'v_mul_u32_u24 v223, {stride}, v223'); A(f'v_lshl_add_u32 {dst}, v222, 4, v223')
    def dma_slices(self, srd, vsrc, soff, n, step, lds_base, oob_from=None):
        A = self
        for k in range(n):
            if k % 4 == 0:
                if k == 0: A(f's_mov_b32 m0, {lds_base}')
                else: A('s_add_u32 m0, m0, 4096')
            if oob_from is not None and k == oob_from[0]: A(f's_add_u32 {soff}, {soff}, {oob_from[1]}')
            A(f'buffer_load_dwordx4 {vsrc}, {srd}, {soff} offen offset:{(k%4)*1024} {self.ld} lds')
            if k + 1 < n:
                d = step - 1024 if (k % 4) != 3 else step + 3072
                A(f's_add_u32 {soff}, {soff}, {d}')

    def kv_issue(self):
        A = self
        A(f's_lshl_b32 {T0}, {G}, 23'); A(f's_lshl_b32 {T1}, {W}, 18'); A(f's_add_u32 {T0}, {T0}, {T1}')
        A(f's_lshl_b32 {T1}, {J}, 12'); A(f's_add_u32 {T0}, {T0}, {T1}'); A(f's_add_u32 {T0}, {T0}, {28672*256}')
        A(f's_add_u32 {T1}, {T0}, 131072'); A(f's_lshl_b32 {T2}, {W}, 13')
        A(f'v_lshrrev_b32 v222, 4, {L}'); A(f'v_and_b32 v224, 15, {L}'); A('v_lshlrev_b32 v223, 1, v222'); A('v_lshlrev_b32 v225, 8, v222')
        A('v_xor_b32 v223, v223, v224'); A('v_lshl_add_u32 v226, v223, 4, v225'); A('v_xor_b32 v227, 128, v226')
        for T in range(2):
            A(f's_add_u32 m0, {T2}, {V_L + T*4096}')
            if T == 0: A('v_xor_b32 v223, v222, v224')
            for n in range(4): A(f'buffer_load_dwordx4 v{226+(n&1)}, {sV}, {T1 if T else T0} offen offset:{n*1024} {self.ld} lds')
        A('v_lshl_add_u32 v228, v223, 4, v225')
        for n in range(1, 4): A(f'v_xor_b32 v{228+n}, {64*n}, v228')
        for T in range(2):
            A(f's_add_u32 m0, {T2}, {K_L + T*4096}')
            for n in range(4): A(f'buffer_load_dwordx4 v{228+n}, {sK}, {T1 if T else T0} offen offset:{n*1024} {self.ld} lds')
    def v_frags(self):
        A = self
        A(f'v_lshrrev_b32 v222, 4, {L}'); A(f'v_bfe_u32 v223, {L}, 2, 2'); A('v_lshl_add_u32 v222, v222, 2, v223')
        A('v_and_b32 v223, 7, v222'); A(f's_lshl_b32 {T0}, {W}, 1'); A(f'v_xor_b32 v223, {T0}, v223'); A('v_lshlrev_b32 v223, 5, v223')
        A('v_lshl_add_u32 v222, v222, 8, v223'); A(f'v_and_b32 v223, 3, {L}'); A('v_lshl_add_u32 v222, v223, 3, v222'); A('v_xor_b32 v223, 32, v222')
        for U in range(2):
            for w in range(4):
                d = VF + 16 * U + 4 * w
                A(f'ds_read_b64_tr_b16 {v(d,2)}, v{222+U} offset:{V_L + w*8192}')
                A(f'ds_read_b64_tr_b16 {v(d+2,2)}, v{222+U} offset:{V_L + w*8192 + 4096}')
    def k_frags(self):
        A = self
        A(f'v_and_b32 v224, 15, {L}'); A(f'v_lshrrev_b32 v225, 4, {L}'); A('v_xor_b32 v225, v225, v224'); A('v_lshlrev_b32 v225, 4, v225')
        A('v_lshl_add_u32 v224, v224, 8, v225'); A(f's_lshl_b32 {T0}, {W}, 13'); A(f'v_add_u32 v224, {T0}, v224')
        for t in range(1, 4): A(f'v_xor_b32 v{224+t}, {64*t}, v224')
        for T in range(2):
            for t in range(4): A(f'ds_read_b128 {v(KF+16*T+4*t,4)}, v{224+t} offset:{K_L + T*4096}')
    def q_load(self): return f'buffer_load_dwordx4 {v(XF,4)}, {vLin}, {sWS}, {oQ} offen sc1'
    def q_share(self):
        self(f'ds_write_b128 {vQXW}, {v(XF,4)}')
    def q_read(self):
        for t in range(4): self(f'ds_read_b128 {v(QB+4*t,4)}, {vQXR} offset:{64*t}')

    def first_q(self, is_w):
        A = self
        nl = 4 if is_w else 0
        pre = 0 if is_w else 8
        A(f's_waitcnt vmcnt({8+pre})'); A('s_barrier')
        self.stamp('V_landed')
        A(f'v_lshlrev_b32 v238, 2, {L}')
        l0 = self.lab('fq_n0'); A(f's_cmp_lg_u32 {W}, 0'); A(f's_cbranch_scc1 {l0}')
        fl = f'buffer_load_dword v239, v238, {sDBG}, 0 offen sc1'
        A(fl); A(self.q_load())
        A(f'{l0}:')
        self.v_frags()
        if is_w: self.w2_issue()
        l1 = self.lab('fq_k'); l2 = self.lab('fq_k2')
        A(f's_cmp_lg_u32 {W}, 0'); A(f's_cbranch_scc1 {l1}')
        A(f's_waitcnt vmcnt({(7 if is_w else 10)})'); A(f's_branch {l2}')
        A(f'{l1}:'); A(f's_waitcnt vmcnt({nl+pre})')
        A(f'{l2}:')
        self.stamp('K_landed')
        self.k_frags()
        lb = self.lab('fq_b1'); A(f's_cmp_lg_u32 {W}, 0'); A(f's_cbranch_scc1 {lb}')
        lp = self.lab('q0'); lo = self.lab('q0ok')
        A(f's_mov_b32 {CNT}, 0'); A(f's_waitcnt vmcnt({nl})')
        A(f'{lp}:')
        A('v_add_u32 v232, 0xfefefeff, v239'); A('v_not_b32 v233, v239'); A('v_and_b32 v232, v232, v233'); A('v_and_b32 v232, 0x80808080, v232')
        A('v_cmp_ne_u32 vcc, 0, v232'); A(f's_lshl_b32 {T0}, {G}, 3'); A(f's_lshr_b64 s[12:13], vcc, {T0}'); A('s_and_b32 s12, s12, 0xff')
        self.chk_regs(range(XF, XF + 4), 234)
        A('s_or_b32 vcc_lo, vcc_lo, s12'); A('s_cmp_eq_u64 vcc, 0'); A(f's_cbranch_scc1 {lo}')
        A(fl); A(self.q_load())
        A(f's_add_u32 {CNT}, {CNT}, 1'); A(f's_cmp_gt_u32 {CNT}, {MAXPOLL}'); A('s_cbranch_scc1 L_bail')
        A('s_waitcnt vmcnt(0)'); A(f's_branch {lp}')
        A(f'{lo}:')
        A(f'v_cmp_ne_u32 vcc, {OWN4}, v239'); A(f's_lshr_b64 s[12:13], vcc, {T0}'); A('s_and_b32 s12, s12, 0xff')
        A('s_cmp_eq_u32 s12, 0'); A(f's_cselect_b32 {T1}, 1, 0')
        if self.o.force_slow: A(f's_mov_b32 {T1}, 0')
        A(f'v_mov_b32 v232, {T1}'); A(f'v_mov_b32 v233, {FX}'); A('ds_write_b32 v233, v232')
        self.q_share()
        A(f'{lb}:')
        A('s_waitcnt lgkmcnt(0)'); A('s_barrier')
        A(f'v_mov_b32 v233, {FX}'); A('ds_read_b32 v232, v233')
        self.q_read()
        A('s_waitcnt lgkmcnt(0)')
        A(f'v_readfirstlane_b32 {FAST}, v232')
    def next_q(self, sleep=0):
        A = self
        lb = self.lab('nq_b1'); A(f's_cmp_lg_u32 {W}, 0'); A(f's_cbranch_scc1 {lb}')
        self.poll([self.q_load()], lambda: self.chk_regs(range(XF, XF + 4), 220), 'q', sleep)
        self.q_share()
        A(f'{lb}:')
        A('s_waitcnt lgkmcnt(0)'); A('s_barrier')
        self.q_read()
        A('s_waitcnt lgkmcnt(0)')

    def s2(self):
        A = self
        ST0, ST1, M, TT = 180, 184, 188, 189
        for t in range(4):
            for T, ST in ((0, ST0), (1, ST1)):
                A(f'v_mfma_f32_16x16x32_bf16 {v(ST,4)}, {v(KF+16*T+4*t,4)}, {v(QB+4*t,4)}, {v(ST,4) if t else 0}')
        A(f'v_max3_f32 v{M}, v{ST0}, v{ST0+1}, v{ST0+2}'); A(f'v_max3_f32 v{TT}, v{ST0+3}, v{ST1}, v{ST1+1}')
        A(f'v_max3_f32 v{M}, v{M}, v{ST1+2}, v{ST1+3}'); A(f'v_max_f32 v{M}, v{M}, v{TT}')
        self.swap_red('v_max_f32', M, TT, 16); self.swap_red('v_max_f32', M, TT, 32)
        A('s_mov_b64 exec, 15'); A(f'ds_write_b32 {vMW}, v{M}'); A('s_mov_b64 exec, -1')
        A('s_waitcnt lgkmcnt(0)'); A('s_barrier')
        A(f'ds_read_b128 {v(192,4)}, {vMR}'); A('s_waitcnt lgkmcnt(0)')
        A(f'v_max3_f32 v{M}, v192, v193, v194'); A(f'v_max_f32 v{M}, v{M}, v195'); A(f'v_mul_f32 v{M}, {CEXP}, v{M}')
        for k in range(8): A(f'v_fma_f32 v{ST0+k}, v{ST0+k}, {CEXP}, -v{M}')
        for k in range(8): A(f'v_exp_f32 v{ST0+k}, v{ST0+k}')
        for k in range(4): A(f'v_cvt_pk_bf16_f32 v{192+k}, v{ST0+2*k}, v{ST0+2*k+1}')
        A(f's_mov_b64 exec, {MASK4}'); A(f'ds_write_b128 {vPW}, {v(192,4)}'); A('s_mov_b64 exec, -1')
        A(f'v_add_f32 v{TT}, v{ST0}, v{ST0+1}'); A(f'v_add_f32 v196, v{ST0+2}, v{ST0+3}'); A(f'v_add_f32 v197, v{ST0+4}, v{ST0+5}'); A(f'v_add_f32 v198, v{ST0+6}, v{ST0+7}')
        A(f'v_add_f32 v{TT}, v{TT}, v196'); A('v_add_f32 v197, v197, v198'); A(f'v_add_f32 v{TT}, v{TT}, v197')
        A(f's_mov_b64 exec, {MASK4}'); A(f'ds_write_b32 {vLW}, v{TT}'); A('s_mov_b64 exec, -1')
        A('s_waitcnt lgkmcnt(0)'); A('s_barrier')
        PB = 192
        for w in range(4): A(f'ds_read_b128 {v(PB+4*w,4)}, {vPR} offset:{w*256}')
        A(f'ds_read_b32 v190, {vLR}')
        A('s_waitcnt lgkmcnt(0)')
        OT0, OT1 = 208, 212
        mf = [f'v_mfma_f32_16x16x32_bf16 {v(OT,4)}, {v(VF+16*U+4*w,4)}, {v(PB+4*w,4)}, {v(OT,4) if w else 0}' for w in range(4) for U, OT in ((0, OT0), (1, OT1))]
        va = ['v_add_f32_dpp v190, v190, v190 row_ror:4 row_mask:0xf bank_mask:0xf', f'v_mov_b32 v{MLQ}, v{M}',
              'v_add_f32_dpp v190, v190, v190 row_ror:8 row_mask:0xf bank_mask:0xf',
              'v_mov_b32 v191, v190', 'v_permlane16_swap_b32 v190, v191', 'v_add_f32 v190, v190, v191',
              'v_mov_b32 v191, v190', 'v_permlane32_swap_b32 v190, v191', f'v_add_f32 v{MLQ+1}, v190, v191']
        self.interleave(mf, va, per=2)
        lm = self.lab('noml')
        A(f's_cmp_lg_u32 {W}, 3'); A(f's_cbranch_scc1 {lm}')
        A('s_mov_b64 exec, 15'); self.pub(f'buffer_store_dwordx4 {v(MLQ,4)}, {vMLp}, {sWS}, {oML} offen'); A('s_mov_b64 exec, -1')
        A(f'{lm}:')
        for k in range(8): self.put_tag(OT0 + k)
        A(f's_mov_b64 exec, {MASK4}')
        self.pub([f'buffer_store_dwordx4 {v(OT0,4)}, {vRSp}, {sWS}, {oRS} offen', f'buffer_store_dwordx4 {v(OT1,4)}, {vRSp}, {sWS}, {oRS} offen offset:16'])
        A('s_mov_b64 exec, -1')

    def common_addr(self):
        A = self
        A(f'v_and_b32 v222, 15, {L}'); A(f'v_lshrrev_b32 v223, 4, {L}')
        A('v_lshlrev_b32 v224, 4, v223'); A('v_and_b32 v225, 3, v222')
        A(f'v_lshl_add_u32 {vXF}, v222, 6, v224')
        A('v_mul_u32_u24 v226, 320, v225'); A('v_add_u32 v226, v226, v224'); A(f'v_add_u32 {vQXR}, {QX}, v226')
        A('v_mul_u32_u24 v226, 320, v223'); A('v_lshl_add_u32 v226, v222, 4, v226'); A(f'v_add_u32 {vQXW}, {QX}, v226')
        A(f's_lshl_b32 {T0}, {W}, 12'); A(f's_lshl_b32 {T1}, {J}, 5'); A(f's_add_u32 {T0}, {T0}, {T1}')
        A('v_lshlrev_b32 v226, 14, v222'); A('v_lshl_add_u32 v226, v223, 10, v226'); A(f'v_add_u32 {vRSp}, {T0}, v226')
        A(f's_lshl_b32 {T1}, {J}, 4'); A('v_lshlrev_b32 v226, 9, v225'); A(f'v_add_u32 {vMLp}, {T1}, v226')
        A(f's_lshl_b32 {T0}, {W}, 2'); A(f's_add_u32 {T0}, {T0}, {MX}'); A('v_lshlrev_b32 v226, 4, v225'); A(f'v_add_u32 {vMW}, {T0}, v226')
        A(f'v_add_u32 {vMR}, {MX}, v226')
        A('v_lshlrev_b32 v227, 6, v225'); A('v_add_u32 v226, v227, v224')
        A(f'v_add_u32 {vPR}, {PX}, v226'); A(f's_lshl_b32 {T0}, {W}, 8'); A(f'v_add_u32 {vPW}, {T0}, {vPR}')
        A(f's_lshl_b32 {T0}, {W}, 4'); A(f's_add_u32 {T1}, {T0}, {LX}'); A('v_lshl_add_u32 v228, v223, 2, v227'); A(f'v_add_u32 {vLW}, {T1}, v228')
        A(f'v_and_b32 v228, 60, {L}'); A('v_add_u32 v228, v228, v227'); A(f'v_add_u32 {vLR}, {LX}, v228')
        A(f's_lshl_b64 {MGRP}, 0xffff, {T0}')
        A(f's_lshl_b32 {T0}, {W}, 7'); A(f's_add_u32 {T0}, {T0}, {RED_A}'); A('v_lshlrev_b32 v226, 2, v222'); A(f'v_add_u32 {vRedW}, {T0}, v226')
        A('v_lshlrev_b32 v226, 3, v222'); A(f'v_add_u32 {vRedR}, {RED_A}, v226')
        A('s_mov_b32 s8, 0x000f000f'); A('s_mov_b32 s9, 0x000f000f')
        A(f's_mov_b32 {CEXP}, 0x3e0293ee')
        A(f's_lshl_b32 {T0}, {G}, 10')
        for r, off in ((oQ, OFF_Q), (oO, OFF_O), (oX1, OFF_X1), (oGU, OFF_GU), (oX2, OFF_X2)): A(f's_add_u32 {r}, {T0}, {off}')
        A(f's_lshl_b32 {T0}, {G}, 11'); A(f's_add_u32 {oML}, {T0}, {OFF_ML}')
        A(f's_lshl_b32 {T0}, {G}, 16'); A(f's_add_u32 {oRS}, {T0}, {OFF_RS}')
        A(f's_mov_b32 {oC1}, {OFF_C1}'); A(f's_mov_b32 {oC2}, {OFF_C2}')
        for k in (4, 5, 6, 7, 8):
            A(f's_mov_b32 s{srd_lo(k)+2}, {SIZES[k]}'); A(f's_mov_b32 s{srd_lo(k)+3}, 0x20000')
        A(f's_mov_b32 {MASK12}, 0xfff')
        A('s_waitcnt lgkmcnt(0)')
        A(f's_add_u32 {TAG32}, {TAG32}, 1'); A(f's_and_b32 {T0}, {TAG32}, 0xfff'); A(f'v_mov_b32 {vTAG}, {T0}')
        A(f'v_mov_b32 v{MLQ+2}, {TAG32}'); A(f'v_mov_b32 v{MLQ+3}, {TAG32}')

    def next_pass(self):
        A = self
        for r in (oQ, oO, oX1, oGU): A(f's_add_u32 {r}, {r}, 8192')
        A(f's_add_u32 {oML}, {oML}, 16384')
        A(f's_add_u32 {oRS}, {oRS}, 524288'); A(f's_add_u32 {oC1}, {oC1}, 131072'); A(f's_add_u32 {oC2}, {oC2}, 262144')
        A(f's_mov_b32 {PASS}, 1')

    def small_clear(self):
        A = self; l = self.lab('noclr')
        A(f's_cmp_lg_u32 {W}, 3'); A(f's_cbranch_scc1 {l}')
        for k in range(4): A(f'v_mov_b32 v{232+k}, -1')
        A(f'v_lshrrev_b32 v236, 2, {L}'); A(f'v_and_b32 v237, 3, {L}'); A('v_lshlrev_b32 v236, 13, v236'); A('v_lshl_add_u32 v236, v237, 4, v236')
        A(f's_lshl_b32 {T0}, {G}, 10'); A(f's_lshl_b32 {T1}, {R}, 6'); A(f's_add_u32 {T0}, {T0}, {T1}')
        A('s_mov_b32 exec_lo, -1'); A('s_mov_b32 exec_hi, 15')
        A(f'buffer_store_dwordx4 {v(232,4)}, v236, {sWS}, {T0} offen sc1')
        A('s_mov_b64 exec, -1')
        A(f'{l}:')
    def set_flag(self):
        A = self; l = self.lab('noflag')
        A(f's_cmp_lg_u32 {W}, 3'); A(f's_cbranch_scc1 {l}')
        A(f's_lshl_b32 {T0}, {G}, 5'); A(f's_add_u32 {T0}, {T0}, {J}')
        A(f's_and_b32 {T1}, {OWN4}, 0xff'); A(f'v_mov_b32 v237, {T1}'); A('v_mov_b32 v238, 0')
        A('s_mov_b64 exec, 1'); A(f'buffer_store_byte v237, v238, {sDBG}, {T0} offen sc1'); A('s_mov_b64 exec, -1')
        A(f'{l}:')
    def qpre(self):
        A = self
        A(f's_lshl_b32 {T0}, {J}, 17'); A(f's_lshl_b32 {T1}, {W}, 15'); A(f's_add_u32 {T0}, {T0}, {T1}'); A(f's_lshl_b32 {T1}, {G}, 10'); A(f's_add_u32 {T0}, {T0}, {T1}')
        A(f's_mov_b32 m0, {DUM_L}')
        for k in range(4):
            A(f'buffer_load_dwordx4 {vLin}, {sWQ}, {T0} offen {self.ld} lds')
            if k < 3: A(f's_add_u32 {T0}, {T0}, 8192')
    def code_prefetch(self, lo, hi, n):
        if not self.o.codepf: return
        A = self; l = self.lab('nopf'); pc = self.lab('pc')
        A(f's_cmp_lg_u32 {W}, 2'); A(f's_cbranch_scc1 {l}')
        A('s_getpc_b64 s[10:11]'); A(f'{pc}:')
        A(f's_sub_u32 s10, s10, {pc}-{lo}'); A('s_subb_u32 s11, s11, 0')
        A(f'v_lshlrev_b32 v238, 6, {L}')
        for k in range(n):
            A(f'v_min_u32 v239, {hi}-{lo}-4, v238'); A('global_load_dword v255, v239, s[10:11]')
            if k + 1 < n: A('v_add_u32 v238, 4096, v238')
        A(f'{l}:')
    def w2_issue(self):
        A = self
        self.slice_src('v235', 1024)
        A(f's_mul_i32 {T0}, {G}, {224*1024}'); A(f's_lshl_b32 {T1}, {W}, 16'); A(f's_add_u32 {T0}, {T0}, {T1}'); A(f's_lshl_b32 {T1}, {R}, 6'); A(f's_add_u32 {T0}, {T0}, {T1}')
        A(f's_lshl_b32 {T1}, {W}, 12'); A(f's_add_u32 {T1}, {T1}, {W2_L}')
        A(f's_cmp_eq_u32 {W}, 3'); A(f's_cselect_b32 {T2}, 0x10000000, 0')
        self.dma_slices(sW2, 'v235', T0, 4, 16 * 1024, T1, oob_from=(2, T2))

    def build(self):
        A = self
        A('s_cmp_ge_u32 s2, 256'); A('s_cbranch_scc1 L_exit')
        if self.o.stamps or self.o.spin: A('s_memrealtime s[92:93]')
        for k, off in ((3, 24), (2, 16), (1, 8), (10, 88), (0, 0), (9, 80)): A(f's_load_dwordx2 s[{srd_lo(k)}:{srd_lo(k)+1}], s[0:1], {off}')
        A(f'v_and_b32 {L}, 63, v0'); A('v_lshrrev_b32 v222, 6, v0'); A(f's_and_b32 {G}, s2, 7'); A(f'v_readfirstlane_b32 {W}, v222')
        A(f's_lshr_b32 {J}, s2, 3'); A(f's_and_b32 {R}, {J}, 15'); A(f'v_lshlrev_b32 {vLin}, 4, {L}')
        for k in (3, 2, 1, 10, 0, 9):
            A(f's_mov_b32 s{srd_lo(k)+2}, {SIZES[k]}'); A(f's_mov_b32 s{srd_lo(k)+3}, 0x20000')
        A(f's_getreg_b32 {T0}, hwreg(HW_REG_XCC_ID, 0, 4)'); A(f's_add_u32 {T0}, {T0}, 1'); A(f's_mul_i32 {OWN4}, {T0}, 0x01010101')
        A(f's_mov_b32 {FAST}, 0'); A(f's_mov_b32 {PASS}, 0')
        if self.o.stamps: A(f'v_mov_b32 {vST}, 0')
        A('s_waitcnt lgkmcnt(0)')
        if self.o.stamps:
            A('s_mov_b32 m0, 63'); A(f'v_writelane_b32 {vST}, s92, m0')
        A(f's_load_dword {TAG32}, s[80:81], {OFF_EPOCH}')
        for k, off in ((4, 32), (5, 48), (6, 56), (7, 64), (8, 72)): A(f's_load_dwordx2 s[{srd_lo(k)}:{srd_lo(k)+1}], s[0:1], {off}')
        A(f's_cmp_ge_u32 {J}, 16'); A('s_cbranch_scc1 L_F')
        self.build_w()
        self.build_f()
        A('L_bail:')
        self.end()
        A('L_exit:'); A('s_endpgm')

    def build_w(self):
        A = self; o = self.o
        A('L_W:')
        self.qpre()
        self.small_clear()
        self.code_prefetch('L_W', 'L_F', 2)
        A(f'v_and_b32 v222, 15, {L}'); A(f'v_lshrrev_b32 v223, 4, {L}'); A('v_lshlrev_b32 v223, 4, v223'); A(f'v_lshl_add_u32 {vXF}, v222, 6, v223')
        A(f'v_and_b32 v222, 7, {L}'); A(f'v_lshrrev_b32 v223, 5, {L}'); A('v_lshlrev_b32 v223, 2, v223'); A('v_lshl_add_u32 v222, v222, 3, v223')
        A(f's_lshl_b32 {T0}, {R}, 6'); A(f'v_add_u32 {vXp}, {T0}, v222')
        A(f'buffer_load_dwordx4 {v(XF,4)}, {vXF}, {sX}, 0 offen'); A(f'buffer_load_dword {vRES}, {vXp}, {sX}, 0 offen')
        self.slice_src('v235', 8192)
        A(f's_lshl_b32 {T0}, {W}, 20'); A(f's_lshl_b32 {T1}, {G}, 10'); A(f's_add_u32 {T0}, {T0}, {T1}'); A(f's_lshl_b32 {T1}, {R}, 6'); A(f's_add_u32 {T0}, {T0}, {T1}')
        A(f's_lshl_b32 {T1}, {W}, 13'); A(f's_add_u32 {T1}, {T1}, {W_L}')
        self.dma_slices(sWQ, 'v235', T0, 8, 16 * 8192, T1)
        self.kv_issue()
        self.stamp('issued')
        self.common_addr()
        A(f'v_and_b32 v222, 31, {L}'); A(f'v_lshrrev_b32 v223, 5, {L}')
        A(f's_lshl_b32 {T0}, {R}, 12'); A(f's_lshl_b32 {T1}, {W}, 10'); A(f's_add_u32 {T0}, {T0}, {T1}')
        A('v_lshlrev_b32 v224, 5, v222'); A('v_lshl_add_u32 v224, v223, 4, v224'); A(f'v_add_u32 {vRSg}, {T0}, v224')
        A(f's_lshr_b32 {T0}, {R}, 2'); A(f's_lshl_b32 {T0}, {T0}, 9'); A('v_lshlrev_b32 v224, 4, v222'); A(f'v_add_u32 {vMLg}, {T0}, v224')
        A(f's_lshl_b32 {T0}, {R}, 6'); A(f's_lshl_b32 {T1}, {W}, 3'); A(f's_add_u32 {T0}, {T0}, {T1}')
        A('v_lshlrev_b32 v224, 5, v223'); A(f'v_bfe_u32 v225, {L}, 4, 1'); A('v_lshl_add_u32 v224, v225, 2, v224'); A(f'v_add_u32 {vOp}, {T0}, v224')
        A(f'v_lshrrev_b32 v223, 3, {L}'); A(f'v_and_b32 v224, 7, {L}'); A('v_lshlrev_b32 v225, 4, v224')
        A(f's_lshl_b32 {T0}, {R}, 10'); A(f's_lshl_b32 {T1}, {G}, 7'); A(f's_add_u32 {T1}, {T1}, {T0}')
        A('v_lshl_add_u32 v226, v223, 14, v225'); A(f'v_add_u32 {vCp}, {T1}, v226')
        A(f's_lshl_b32 {T1}, {G}, 14'); A(f's_add_u32 {T1}, {T1}, {T0}'); A('v_lshl_add_u32 v226, v223, 7, v225'); A(f'v_add_u32 {vCg}, {T1}, v226')
        A(f'v_add_u32 {vRedR4}, {RED_B}, v225')
        A(f's_lshl_b32 {T0}, {R}, 11'); A(f's_and_b32 {T2}, {W}, 1'); A(f's_lshl_b32 {T1}, {T2}, 10'); A(f's_add_u32 {T0}, {T0}, {T1}')
        A(f's_lshl_b32 {T1}, {G}, 15'); A(f's_add_u32 {T1}, {T1}, {T0}')
        A('v_lshlrev_b32 v226, 7, v223'); A('v_lshl_add_u32 v226, v224, 3, v226'); A(f'v_add_u32 {vC2g}, {T1}, v226')
        A(f's_lshl_b32 {T1}, {R}, 6'); A(f's_lshl_b32 {T2}, {T2}, 5'); A(f's_add_u32 {T1}, {T1}, {T2}'); A('v_lshlrev_b32 v226, 2, v224'); A(f'v_add_u32 {vX8p}, {T1}, v226')
        A(f'v_and_b32 v222, 15, {L}'); A(f'v_lshrrev_b32 v223, 4, {L}'); A('v_lshlrev_b32 v224, 2, v222')
        A(f's_lshl_b32 {T1}, {G}, 7'); A(f's_add_u32 {T1}, {T1}, {T0}'); A('v_lshl_add_u32 v225, v223, 15, v224'); A(f'v_add_u32 {vC2p}, {T1}, v225')
        A(f's_lshl_b32 {T0}, {R}, 6'); A(f'v_add_u32 {vPub}, {T0}, v224')
        A(f'v_min_u32 {vGU}, 223, v0'); A(f'v_lshlrev_b32 {vGU}, 1, {vGU}')
        A(f'v_lshlrev_b32 {vHW}, 1, v0'); A(f'v_add_u32 {vHW}, {HX}, {vHW}')
        A('v_and_b32 v224, 3, v222'); A('v_lshlrev_b32 v224, 6, v224'); A('v_lshl_add_u32 v224, v223, 4, v224'); A(f'v_add_u32 {vHR}, {HX}, v224')
        A('s_waitcnt vmcnt(16)')
        self.stamp('wq_landed')
        self.set_flag()
        self.load_wave_weights(WA)
        self.colsum()
        A('s_branch L_W_S1')
        A('L_W_NEXT:')
        self.poll([f'buffer_load_dwordx4 {v(XF,4)}, {vXF}, {sWS}, {oX2} offen sc1', f'buffer_load_dword {vRES}, {vXp}, {sWS}, {oX2} offen sc1'],
                  lambda: (A(f'v_max3_u32 v220, v{XF}, v{XF+1}, {vRES}'), A(f'v_max3_u32 v220, v220, v{XF+2}, v{XF+3}'), A('v_cmp_eq_u32 vcc, -1, v220')), 'x2', o.sl_x2)
        self.stamp('x_ok')
        A('L_W_S1:')
        self.gemv_core(WA, RED_A, stats=True)
        A('s_waitcnt lgkmcnt(0)'); A('s_barrier')
        l = self.lab('s1w'); A(f's_cmp_lg_u32 {W}, 0'); A(f's_cbranch_scc1 {l}')
        self.ln_finalize_publish(oQ)
        A(f'{l}:')
        self.stamp('q_pub')
        l1 = self.lab('p1q'); l2 = self.lab('s2')
        A(f's_cmp_lg_u32 {PASS}, 0'); A(f's_cbranch_scc1 {l1}')
        self.first_q(True)
        A(f's_branch {l2}')
        A(f'{l1}:')
        self.next_q()
        A(f'{l2}:')
        self.stamp('q_ok')
        self.s2()
        self.stamp('rs_pub')
        def chk_rs():
            self.chk_tag([164, 165, 166, 167], 220)
            A(f'v_bitop3_b32 v221, v170, v171, {TAG32} bitop3:0x7e'); A('v_or_b32 v220, v220, v221'); A('v_cmp_ne_u32 vcc, 0, v220')
        self.poll([f'buffer_load_dwordx4 v[164:167], {vRSg}, {sWS}, {oRS} offen sc1', f'buffer_load_dwordx4 v[168:171], {vMLg}, {sWS}, {oML} offen sc1'], chk_rs, 'rs')
        self.stamp('rs_ok')
        l = self.lab('wo0'); A(f's_cmp_lg_u32 {PASS}, 0'); A(f's_cbranch_scc1 {l}')
        self.slice_src('v235', 1024)
        A(f's_lshl_b32 {T0}, {G}, 19'); A(f's_lshl_b32 {T1}, {W}, 17'); A(f's_add_u32 {T0}, {T0}, {T1}'); A(f's_lshl_b32 {T1}, {R}, 6'); A(f's_add_u32 {T0}, {T0}, {T1}')
        A(f's_lshl_b32 {T1}, {W}, 13'); A(f's_add_u32 {T1}, {T1}, {W_L}')
        self.dma_slices(sWO, 'v235', T0, 8, 16 * 1024, T1)
        A(f'{l}:')
        M, TT, Wt, Lr = 172, 173, 174, 175
        A(f'v_max_f32_dpp v{M}, v168, v168 row_ror:1 row_mask:0xf bank_mask:0xf')
        self.strip_tag(164); self.strip_tag(165)
        self.dpp('v_max_f32', M, 2)
        self.strip_tag(166); self.strip_tag(167)
        self.dpp('v_max_f32', M, 4); self.dpp('v_max_f32', M, 8)
        self.swap_red('v_max_f32', M, TT, 16)
        A(f'v_sub_f32 v{Wt}, v168, v{M}'); A(f'v_exp_f32 v{Wt}, v{Wt}')
        for k in range(4): A(f'v_mul_f32 v{164+k}, v{Wt}, v{164+k}')
        A(f'v_mul_f32 v{Lr}, v{Wt}, v169')
        A('v_permlane16_swap_b32 v164, v166'); A('v_permlane16_swap_b32 v165, v167')
        A(f'v_mov_b32 v{TT}, v{Lr}'); A('v_add_f32 v164, v164, v166'); A('v_add_f32 v165, v165, v167')
        A(f'v_permlane16_swap_b32 v{Lr}, v{TT}'); A(f'v_add_f32 v{Lr}, v{Lr}, v{TT}')
        for ror in (8, 4, 2, 1):
            self.dpp('v_add_f32', Lr, ror); self.dpp('v_add_f32', 164, ror); self.dpp('v_add_f32', 165, ror)
        A(f'v_rcp_f32 v{Lr}, v{Lr}'); A(f'v_mul_f32 v164, v{Lr}, v164'); A(f'v_mul_f32 v165, v{Lr}, v165')
        A('v_cvt_pk_bf16_f32 v164, v164, v165')
        A('s_mov_b32 exec_lo, 0x00010001'); A('s_mov_b32 exec_hi, 0x00010001')
        self.pub(f'buffer_store_dword v164, {vOp}, {sWS}, {oO} offen')
        A('s_mov_b64 exec, -1')
        self.stamp('o_pub')
        self.poll([f'buffer_load_dwordx4 {v(XF,4)}, {vXF}, {sWS}, {oO} offen sc1'], lambda: self.chk_regs(range(XF, XF + 4), 220), 'o')
        self.stamp('o_ok')
        l = self.lab('wo1'); A(f's_cmp_lg_u32 {PASS}, 0'); A(f's_cbranch_scc1 {l}')
        self.load_wave_weights(WB)
        A('s_waitcnt lgkmcnt(0)')
        A(f'{l}:')
        self.gemv_core(WB, RED_B)
        A('s_waitcnt lgkmcnt(0)'); A('s_barrier')
        l5 = self.lab('w_s5'); A(f's_cmp_lg_u32 {W}, 0'); A(f's_cbranch_scc1 {l5}')
        for w in range(4): A(f'ds_read_b128 {v(224+4*w,4)}, {vRedR4} offset:{w*128}')
        A('s_waitcnt lgkmcnt(0)')
        for e in range(4):
            A(f'v_add_f32 v{224+e}, v{224+e}, v{228+e}'); A(f'v_add_f32 v{232+e}, v{232+e}, v{236+e}')
        for e in range(4): A(f'v_add_f32 v{224+e}, v{224+e}, v{232+e}')
        for e in range(4): self.put_tag(224 + e)
        A(f'buffer_store_dwordx4 {v(224,4)}, {vCp}, {sWS}, {oC1} offen sc1')
        self.stamp('c1_pub')
        self.delay(o.d1)
        self.poll([f'buffer_load_dwordx4 {v(164,4)}, {vCg}, {sWS}, {oC1} offen sc1'],
                  lambda: (self.chk_tag(range(164, 168), 220), A('v_cmp_ne_u32 vcc, 0, v220')), 'c1')
        self.stamp('c1_ok')
        for e in range(4): self.strip_tag(164 + e)
        A('v_permlane32_swap_b32 v164, v166'); A('v_permlane32_swap_b32 v165, v167')
        A('v_add_f32 v164, v164, v166'); A('v_add_f32 v165, v165, v167')
        A('v_mov_b32 v168, v164'); A('v_mov_b32 v169, v165')
        A('v_permlane16_swap_b32 v164, v168'); A('v_permlane16_swap_b32 v165, v169')
        A('v_add_f32 v164, v164, v168'); A('v_add_f32 v165, v165, v169')
        A(f'v_lshlrev_b32 v168, 16, {vRES}'); A(f'v_and_b32 v169, 0xffff0000, {vRES}')
        self.dpp('v_add_f32', 164, 8); self.dpp('v_add_f32', 165, 8)
        A('v_add_f32 v164, v164, v168'); A('v_add_f32 v165, v165, v169')
        A('v_cvt_pk_bf16_f32 v164, v164, v165')
        A('s_mov_b32 exec_lo, 0xff'); A('s_mov_b32 exec_hi, 0xff')
        self.pub(f'buffer_store_dword v164, {vXp}, {sWS}, {oX1} offen')
        A('s_mov_b64 exec, -1')
        self.stamp('x1_pub')
        A(f'{l5}:')
        l = self.lab('now2'); A(f's_cmp_lg_u32 {PASS}, 0'); A(f's_cbranch_scc1 {l}'); A(f's_cmp_ge_u32 {W}, 2'); A(f's_cbranch_scc1 {l}')
        A(f's_mov_b32 {T0}, {W2_L}'); self.tr_addr('v236', 'v237', T0)
        A(f's_lshl_b32 {T0}, {W}, 5'); A(f'v_xor_b32 v236, {T0}, v236')
        for t in range(7):
            A(f'ds_read_b64_tr_b16 a[{4*t}:{4*t+1}], v236 offset:{t*2048}'); A(f'ds_read_b64_tr_b16 a[{4*t+2}:{4*t+3}], v236 offset:{t*2048+256}')
        A('s_waitcnt lgkmcnt(0)')
        A(f'{l}:')
        self.poll([f'buffer_load_ushort v164, {vGU}, {sWS}, {oGU} offen sc1', f'buffer_load_ushort v165, {vGU}, {sWS}, {oGU} offen offset:512 sc1',
                   f'buffer_load_dword {vRES8}, {vX8p}, {sWS}, {oX1} offen sc1'],
                  lambda: (A('v_max_u32 v166, v164, v165'), A(f'v_cmp_eq_u32 s[12:13], -1, {vRES8}'), A('v_cmp_eq_u32 vcc, 0xffff, v166'), A('s_or_b64 vcc, vcc, s[12:13]')), 'gu', o.sl_gu)
        self.stamp('gu_ok')
        A('v_lshlrev_b32 v164, 16, v164'); A('v_lshlrev_b32 v165, 16, v165')
        A('v_mul_f32 v166, 0xbfb8aa3b, v164'); A('v_mul_f32 v164, v164, v165'); A('v_exp_f32 v166, v166'); A('v_add_f32 v166, 1.0, v166'); A('v_rcp_f32 v166, v166')
        A('v_mul_f32 v164, v164, v166'); A('v_cvt_pk_bf16_f32 v164, v164, v164')
        A(f'ds_write_b16 {vHW}, v164'); A('s_waitcnt lgkmcnt(0)'); A('s_barrier')
        A(f's_cmp_ge_u32 {W}, 2'); A('s_cbranch_scc1 L_W_TAIL')
        A(f'ds_read_b128 {v(164,4)}, {vHR}'); A(f'ds_read_b128 {v(168,4)}, {vHR} offset:256'); A('s_waitcnt lgkmcnt(0)')
        for r in range(4): A(f'v_mfma_f32_16x16x32_bf16 {v(ACC+4*r,4)}, {v(164,4)}, a[{4*r}:{4*r+3}], 0')
        for r in range(3): A(f'v_mfma_f32_16x16x32_bf16 {v(ACC+4*r,4)}, {v(168,4)}, a[{16+4*r}:{19+4*r}], {v(ACC+4*r,4)}')
        A(f'v_add_f32 v216, v{ACC+15}, v{ACC}'); A(f'v_add_f32 v217, v{ACC+5}, v{ACC+10}'); A('v_add_f32 v216, v216, v217')
        self.put_tag(216)
        lp1 = self.lab('c2p1'); lp2 = self.lab('c2d')
        A(f's_cmp_lg_u32 {PASS}, 0'); A(f's_cbranch_scc1 {lp1}')
        A(f's_add_u32 {T0}, {oC2}, 131072')
        A(f'buffer_store_dword v216, {vC2p}, {sWS}, {oC2} offen sc1'); A(f'buffer_store_dword v216, {vC2p}, {sWS}, {T0} offen sc1')
        A(f's_branch {lp2}')
        A(f'{lp1}:')
        A('s_mov_b64 exec, 0xffff'); A(f'buffer_store_dword v216, {vC2p}, {sWS}, {oC2} offen sc1'); A('s_mov_b64 exec, -1')
        self.stamp('c2_pub')
        A(f's_cmp_lg_u32 {G}, 0'); A('s_cbranch_scc1 L_W_END')
        A(f'{lp2}:')
        self.stamp('c2_pub')
        self.delay(o.d2)
        self.poll([f'buffer_load_dwordx2 v[164:165], {vC2g}, {sWS}, {oC2} offen sc1'],
                  lambda: (self.chk_tag([164, 165], 220), A('v_cmp_ne_u32 vcc, 0, v220')), 'c2')
        self.stamp('c2_ok')
        self.strip_tag(164); self.strip_tag(165)
        A(f'v_lshlrev_b32 v170, 16, {vRES8}'); A(f'v_and_b32 v171, 0xffff0000, {vRES8}')
        self.dpp('v_add_f32', 164, 8); self.dpp('v_add_f32', 165, 8)
        A('v_mov_b32 v168, v164'); A('v_mov_b32 v169, v165')
        A('v_permlane16_swap_b32 v164, v168'); A('v_permlane16_swap_b32 v165, v169')
        A('v_add_f32 v164, v164, v168'); A('v_add_f32 v165, v165, v169')
        A('v_mov_b32 v168, v164'); A('v_mov_b32 v169, v165')
        A('v_permlane32_swap_b32 v164, v168'); A('v_permlane32_swap_b32 v165, v169')
        A('v_add_f32 v164, v164, v168'); A('v_add_f32 v165, v165, v169')
        A('v_add_f32 v164, v164, v170'); A('v_add_f32 v165, v165, v171')
        A('v_cvt_pk_bf16_f32 v164, v164, v165')
        A('s_mov_b64 exec, 0xff')
        lo = self.lab('out'); A(f's_cmp_lg_u32 {PASS}, 0'); A(f's_cbranch_scc1 {lo}')
        self.pub(f'buffer_store_dword v164, {vX8p}, {sWS}, {oX2} offen')
        A('s_mov_b64 exec, -1')
        self.stamp('x2_pub')
        A('L_W_TAIL:')
        A(f's_cmp_lg_u32 {PASS}, 0'); A('s_cbranch_scc1 L_W_END')
        self.next_pass()
        A('s_branch L_W_NEXT')
        A(f'{lo}:')
        A(f'buffer_store_dword v164, {vX8p}, {sOUT}, 0 offen')
        A(f's_or_b32 {T0}, {R}, {W}'); A(f's_cmp_lg_u32 {T0}, 0'); A('s_cbranch_scc1 L_W_END1')
        A(f'v_mov_b32 v168, {TAG32}'); A(f'v_mov_b32 v169, {OFF_EPOCH}'); A('s_mov_b64 exec, 1')
        A(f'buffer_store_dword v168, v169, {sWS}, 0 offen')
        A('L_W_END1:')
        A('s_mov_b64 exec, -1')
        self.stamp('x2_pub')
        A('L_W_END:')
        self.end()

    def build_f(self):
        A = self; o = self.o
        A('L_F:')
        self.qpre()
        self.code_prefetch('L_F', 'L_bail', 1)
        self.kv_issue()
        A('s_waitcnt lgkmcnt(0)')
        A(f's_mov_b32 s{srd_lo(4)+2}, {SIZES[4]}'); A(f's_mov_b32 s{srd_lo(4)+3}, 0x20000')
        A(f's_lshl_b32 {T0}, {G}, 19'); A(f's_lshl_b32 {T1}, {R}, 15'); A(f's_add_u32 {T0}, {T0}, {T1}'); A(f's_lshl_b32 {T1}, {W}, 13'); A(f's_add_u32 {T0}, {T0}, {T1}')
        A(f's_mov_b32 m0, {DUM_L}')
        for k in range(8):
            A(f'buffer_load_dwordx4 {vLin}, {sWO}, {T0} offen {self.ld} lds')
            if k < 7: A(f's_add_u32 {T0}, {T0}, 1024')
        self.set_flag()
        self.stamp('issued')
        self.common_addr()
        A(f'v_and_b32 v222, 15, {L}'); A('v_lshlrev_b32 v224, 2, v222')
        A(f's_and_b32 {T0}, {R}, 1'); A(f's_lshl_b32 {T0}, {T0}, 9'); A(f's_lshr_b32 {T1}, {R}, 1'); A(f's_lshl_b32 {T1}, {T1}, 6'); A(f's_add_u32 {T0}, {T0}, {T1}')
        A(f'v_add_u32 {vPub}, {T0}, v224')
        self.first_q(False)
        l = self.lab('nof1'); A(f's_cmp_ge_u32 {R}, 14'); A(f's_cbranch_scc1 {l}')
        A(f's_and_b32 {T0}, {R}, 1'); A(f's_cmp_eq_u32 {T0}, 0')
        A('s_cselect_b32 s84, s60, s64'); A('s_cselect_b32 s85, s61, s65'); A('s_mov_b32 s86, 1835008'); A('s_mov_b32 s87, 0x20000')
        self.slice_src('v235', 3584)
        A(f's_mul_i32 {T0}, {W}, {128*3584}'); A(f's_mul_i32 {T1}, {G}, 448'); A(f's_add_u32 {T0}, {T0}, {T1}')
        A(f's_lshr_b32 {T1}, {R}, 1'); A(f's_lshl_b32 {T1}, {T1}, 6'); A(f's_add_u32 {T0}, {T0}, {T1}')
        A(f's_lshl_b32 {T1}, {W}, 13'); A(f's_add_u32 {T1}, {T1}, {W_L}')
        self.dma_slices(sWF, 'v235', T0, 8, 16 * 3584, T1)
        A(f'{l}:')
        A('s_branch L_F_S2')
        A('L_F_NEXT:')
        self.next_q(o.sl_q)
        A('L_F_S2:')
        self.stamp('q_ok')
        self.s2()
        self.stamp('rs_pub')
        A(f's_cmp_ge_u32 {R}, 14'); A('s_cbranch_scc1 L_F_TAIL')
        l = self.lab('late'); A(f's_cmp_lg_u32 {PASS}, 0'); A(f's_cbranch_scc1 {l}')
        A('s_waitcnt vmcnt(0)')
        self.stamp('f1_landed')
        self.load_wave_weights(WA)
        self.colsum()
        A(f'{l}:')
        self.poll([f'buffer_load_dwordx4 {v(XF,4)}, {vXF}, {sWS}, {oX1} offen sc1'], lambda: self.chk_regs(range(XF, XF + 4), 220), 'x1', o.sl_x1)
        self.stamp('x1_ok')
        self.gemv_core(WA, RED_A, stats=True)
        A('s_waitcnt lgkmcnt(0)'); A('s_barrier')
        l = self.lab('s6w'); A(f's_cmp_lg_u32 {W}, 0'); A(f's_cbranch_scc1 {l}')
        self.ln_finalize_publish(oGU)
        self.stamp('gu_pub')
        A(f'{l}:')
        A('L_F_TAIL:')
        A(f's_cmp_lg_u32 {PASS}, 0'); A('s_cbranch_scc1 L_F_END')
        self.next_pass()
        A('s_branch L_F_NEXT')
        A('L_F_END:')
        self.end()

def emit(opt):
    k = K(opt); k.build()
    body = k.a.finalize()
    head = open('cdna_kernels/' + NAME + '.s.ref').read().split('; Override launch')[0]
    txt = head + f"""; Override launch geometry by editing the next line. Harness parses it; keep it on one line.
; @launch grid=(256,1,1) block=(256,1,1) lds={LDS_SIZE}
.amdgcn_target "amdgcn-amd-amdhsa--gfx950"
.text
.globl {NAME}_kernel
.p2align 8
.type {NAME}_kernel,@function
{NAME}_kernel:
{body}
.section .rodata,"a"
.p2align 6
.amdhsa_kernel {NAME}_kernel
  .amdhsa_next_free_vgpr 288
  .amdhsa_next_free_sgpr 102
  .amdhsa_accum_offset 256
  .amdhsa_group_segment_fixed_size 0
  .amdhsa_kernarg_size 96
  .amdhsa_user_sgpr_count 2
  .amdhsa_user_sgpr_kernarg_segment_ptr 1
  .amdhsa_system_sgpr_workgroup_id_x 1
  .amdhsa_float_denorm_mode_32 3
.end_amdhsa_kernel
"""
    return txt, k

def options(argv=None):
    p = argparse.ArgumentParser()
    p.add_argument('-o', default='cdna_kernels/' + NAME + '.s')
    p.add_argument('--stamps', action='store_true'); p.add_argument('--no-nt', dest='nt', action='store_false')
    p.add_argument('--no-codepf', dest='codepf', action='store_false')
    p.add_argument('--spin', type=int, default=0); p.add_argument('--probe', default=''); p.add_argument('--probe-pass', type=int, default=0)
    p.add_argument('--force-slow', action='store_true'); p.add_argument('--d1', type=int, default=0); p.add_argument('--d2', type=int, default=0)
    for n in ('x2', 'gu', 'q', 'x1'): p.add_argument('--sl-' + n, dest='sl_' + n, type=int, default=0)
    return p.parse_args(argv)

if __name__ == '__main__':
    opt = options()
    txt, k = emit(opt)
    open(opt.o, 'w').write(txt)
    print('wrote', opt.o, 'instr', len(k.a.ins), 'nops inserted', k.a.inserted, 'stamps', k.stamp_names)
```

```python
import sys, os, argparse
sys.path.insert(0, os.path.dirname(os.path.abspath(__file__)))
from asmgen import Asm

NAME = 'interleave_layers__sliding_block_cached__glu_gated_swiglu__decode'

OFF_Q = 0x00000; OFF_O = 0x04000; OFF_X1 = 0x08000; OFF_GU = 0x0C000; OFF_X2 = 0x10000; OFF_EPOCH = 0x13000; OFF_ML = 0x14000
OFF_Q0T = 0x1C000; OFF_RS = 0x20000; OFF_C1 = 0x120000; OFF_C2 = 0x160000
OFF_DIAG = 0x200000
V_L = 0; K_L = 32768; W_L = 65536; W2_L = 98304; DUM_L = 114688
RED_A = 115712; RED_B = 116224; RED_C = 116736; MX = 117248; FX = 117376; PX = 117504; LX = 118528; HX = 118784; QX = 119296
LDS_SIZE = 120832
G, J, W, R = 's4', 's5', 's6', 's7'
sX, sK, sV, sWQ, sWO, sW1, sW3, sW2, sOUT, sDBG, sWS, sWF = [f's[{40+4*k}:{43+4*k}]' for k in range(12)]
def srd_lo(k): return 40 + 4 * k
FAST, PASS, CNT = 's16', 's17', 's18'
T0, T1, T2, T3, T4 = 's19', 's20', 's21', 's22', 's23'
MGRP = 's[24:25]'
oQ, oRS, oML, oO, oC1, oX1, oGU, oC2, oX2 = 's26', 's27', 's28', 's29', 's30', 's31', 's32', 's33', 's34'
CEXP = 's35'; XCC = 's39'; FASTA = 's36'; TQ = 's37'; oQ0 = 's38'
MASK4 = 's[8:9]'
TAG32, MASK12 = 's14', 's15'
L = 'v1'
vXF, vGp, vRSp, vRSg, vMLg, vOp, vCp, vCg, vXp, vPub, vRedW, vRedR, vPW, vPR = [f'v{k}' for k in range(2, 16)]
KF = 16; VF = 48; WA = 80; WB = 112; CS = 144
vMW, vMR, vLW, vLR, vGU, vHW, vHR, vMLp, vRES, vRedR4 = [f'v{k}' for k in range(146, 156)]
MLQ = 156
XF = 160; QB = 164; ACC = 180
ONES = 240
vQXW, vLin, vC2p, vC2g, vX8p, vRES8, vTAG, vST, vQXR = 'v244', 'v245', 'v248', 'v249', 'v250', 'v251', 'v252', 'v253', 'v254'
def v(a, n=1): return f'v{a}' if n == 1 else f'v[{a}:{a+n-1}]'
MAXPOLL = 60000
SIZES = {0: 1024, 1: 0x4000000, 2: 0x4000000, 3: 0x400000, 4: 0x400000, 5: 1835008, 6: 1835008, 7: 1835008, 8: 1024, 9: 256, 10: 0x10000000}

class K:
    def __init__(self, opt):
        self.o = opt; self.a = Asm(); self.nlab = 0; self.stamp_names = []
        self.ld = 'nt' if opt.nt else ''
    def __call__(self, t): self.a(t)
    def lab(self, base):
        self.nlab += 1; return f'L_{base}_{self.nlab}'
    def stamp(self, name):
        A = self
        if self.o.probe == name:
            l = self.lab('probe'); A(f's_cmp_lg_u32 {PASS}, {self.o.probe_pass}'); A(f's_cbranch_scc1 {l}')
            A('s_memrealtime s[92:93]'); A('s_waitcnt lgkmcnt(0)'); A(f'{l}:')
        if not self.o.stamps: return
        if name not in self.stamp_names: self.stamp_names.append(name)
        k = self.stamp_names.index(name)
        A('s_memrealtime s[88:89]'); A('s_waitcnt lgkmcnt(0)')
        A(f's_lshl_b32 s90, {PASS}, 5'); A(f's_add_u32 s90, s90, {k}'); A('s_mov_b32 s91, m0'); A('s_mov_b32 m0, s90')
        A(f'v_writelane_b32 {vST}, s88, m0'); A('s_mov_b32 m0, s91')
    def flush_stamps(self):
        if not self.o.stamps: return
        A = self
        A('s_mov_b64 exec, -1')
        A(f's_lshl_b32 s90, s2, 2'); A(f's_add_u32 s90, s90, {W}'); A('s_lshl_b32 s90, s90, 8'); A(f's_add_u32 s90, s90, {OFF_DIAG}')
        A(f'v_lshlrev_b32 v255, 2, {L}')
        A(f'buffer_store_dword {vST}, v255, {sWS}, s90 offen')
    def end(self):
        if self.o.spin:
            A = self; l = self.lab('spin'); d = self.lab('spind')
            A('s_waitcnt lgkmcnt(0)')
            A('s_mov_b32 s96, 0'); A(f'{l}:'); A(('s_memtime' if self.o.cyc else 's_memrealtime') + ' s[94:95]'); A('s_waitcnt lgkmcnt(0)'); A('s_sub_u32 s94, s94, s92')
            A('s_add_u32 s96, s96, 1'); A('s_cmp_gt_u32 s96, 200000'); A(f's_cbranch_scc1 {d}')
            A(f's_cmp_lt_u32 s94, {self.o.spin}'); A(f's_cbranch_scc1 {l}'); A(f'{d}:')
        self.flush_stamps(); self('s_endpgm')
    def delay(self, n):
        while n > 0:
            self(f's_nop {min(n,16)-1}'); n -= min(n, 16)

    def poll(self, loads, check, name, sleep=0):
        A = self; lp = self.lab('poll_' + name)
        A(f's_mov_b32 {CNT}, 0')
        A(f'{lp}:')
        for t in loads: A(t)
        A(f's_add_u32 {CNT}, {CNT}, 1'); A(f's_cmp_gt_u32 {CNT}, {MAXPOLL}'); A('s_cbranch_scc1 L_bail')
        A('s_waitcnt vmcnt(0)')
        check()
        if sleep:
            lo = self.lab('pok'); A(f's_cbranch_vccz {lo}'); A(f's_sleep {sleep}'); A(f's_branch {lp}'); A(f'{lo}:')
        else:
            A(f's_cbranch_vccnz {lp}')
    def chk_regs(self, regs, tmp):
        A = self; regs = list(regs)
        A(f'v_max3_u32 v{tmp}, v{regs[0]}, v{regs[1]}, v{regs[2]}'); rest = regs[3:]
        while rest:
            if len(rest) >= 2: A(f'v_max3_u32 v{tmp}, v{tmp}, v{rest[0]}, v{rest[1]}'); rest = rest[2:]
            else: A(f'v_max_u32 v{tmp}, v{tmp}, v{rest[0]}'); rest = []
        A(f'v_cmp_eq_u32 vcc, -1, v{tmp}')
    def chk_tag(self, regs, tmp):
        A = self; regs = list(regs)
        A(f'v_bitop3_b32 v{tmp}, v{regs[0]}, v{regs[1]}, {vTAG} bitop3:0x7e')
        if len(regs) == 4:
            A(f'v_bitop3_b32 v{tmp+1}, v{regs[2]}, v{regs[3]}, {vTAG} bitop3:0x7e')
            A(f'v_bitop3_b32 v{tmp}, v{tmp}, v{tmp+1}, {MASK12} bitop3:0xa8')
        else:
            A(f'v_and_b32 v{tmp}, {MASK12}, v{tmp}')
    def put_tag(self, r): self(f'v_bfi_b32 v{r}, {MASK12}, {vTAG}, v{r}')
    def strip_tag(self, r): self(f'v_and_b32 v{r}, 0xfffff000, v{r}')
    def pub(self, texts, flag=FAST):
        A = self; ls = self.lab('slow'); ld = self.lab('pubd')
        if isinstance(texts, str): texts = [texts]
        A(f's_cmp_eq_u32 {flag}, 0'); A(f's_cbranch_scc1 {ls}')
        for t in texts: A(t)
        A(f's_branch {ld}')
        A(f'{ls}:')
        for t in texts: A(t + ' sc1')
        A(f'{ld}:')

    def swap_red(self, op, r, t, which):
        A = self
        A(f'v_mov_b32 v{t}, v{r}'); A(f'v_permlane{which}_swap_b32 v{r}, v{t}'); A(f'{op} v{r}, v{r}, v{t}')
    def dpp(self, op, r, ror):
        self(f'{op}_dpp v{r}, v{r}, v{r} row_ror:{ror} row_mask:0xf bank_mask:0xf')
    def interleave(self, mf, va, per=3):
        va = list(va)
        for m in mf:
            self(m)
            for _ in range(per):
                if va: self(va.pop(0))
        for x in va: self(x)

    def gemv_core(self, WR, red, a=XF, stats=False):
        A = self
        D = lambda T, t: ACC + 16 * T + 4 * t
        mf = [f'v_mfma_f32_16x16x32_bf16 {v(D(T,t),4)}, {v(a,4)}, {v(WR+8*t+4*T,4)}, 0' for t in range(4) for T in range(2)]
        va = []
        S1, S2, TT = 212, 213, 214
        if stats:
            va.append(f'v_dot2_f32_bf16 v{S1}, v{a}, v221, 0'); va.append(f'v_dot2_f32_bf16 v{S2}, v{a}, v{a}, 0')
            for k in range(1, 4):
                va.append(f'v_dot2_f32_bf16 v{S1}, v{a+k}, v221, v{S1}'); va.append(f'v_dot2_f32_bf16 v{S2}, v{a+k}, v{a+k}, v{S2}')
            va += [f'v_permlane32_swap_b32 v{S1}, v{S2}', f'v_add_f32 v{S1}, v{S1}, v{S2}',
                   f'v_mov_b32 v{TT}, v{S1}', f'v_permlane16_swap_b32 v{S1}, v{TT}', f'v_add_f32 v{S1}, v{S1}, v{TT}']
            for ror in (8, 4, 2, 1): va.append(f'v_add_f32_dpp v{S1}, v{S1}, v{S1} row_ror:{ror} row_mask:0xf bank_mask:0xf')
            va += [f'v_mov_b32 v{S2}, v{S1}', f'v_permlane32_swap_b32 v{S1}, v{S2}',
                   f'v_mul_f32 v{S1}, 0x3b000000, v{S1}', f'v_mul_f32 v{S2}, 0x3b000000, v{S2}',
                   f'v_fma_f32 v{S2}, -v{S1}, v{S1}, v{S2}', f'v_max_f32 v{S2}, 0, v{S2}', f'v_add_f32 v{S2}, 0x3727c5ac, v{S2}',
                   f'v_rsq_f32 v{S2}, v{S2}']
            A('v_mov_b32 v221, 0x3f803f80')
        self.interleave(mf, va, per=3)
        P0, P1 = 216, 217
        for T, P in ((0, P0), (1, P1)):
            A(f'v_add_f32 v{P}, v{D(T,0)}, v{D(T,1)+1}'); A(f'v_add_f32 v{P+2}, v{D(T,2)+2}, v{D(T,3)+3}')
        for P in (P0, P1): A(f'v_add_f32 v{P}, v{P}, v{P+2}')
        if red != RED_A: A(f'v_add_u32 v215, {red-RED_A}, {vRedW}')
        A(f's_mov_b64 exec, {MGRP}')
        A(f'ds_write2_b32 {vRedW if red == RED_A else "v215"}, v{P0}, v{P1} offset0:0 offset1:16')
        A('s_mov_b64 exec, -1')
    def colsum(self):
        A = self
        for k in range(4): A(f'v_mov_b32 v{ONES+k}, 0x3f803f80')
        A('s_waitcnt lgkmcnt(0)')
        self.gemv_core(WA, RED_C, a=ONES)

    def ln_finalize_publish(self, soff, flag, tagged_pass0=False):
        A = self
        for w in range(4): A(f'ds_read_b64 {v(224+2*w,2)}, {vRedR} offset:{w*128}')
        lc = self.lab('nocs')
        A(f's_cmp_lg_u32 {PASS}, 0'); A(f's_cbranch_scc1 {lc}')
        for w in range(4): A(f'ds_read_b64 {v(232+2*w,2)}, {vRedR} offset:{RED_C-RED_A+w*128}')
        A('s_waitcnt lgkmcnt(0)')
        for e in range(2):
            A(f'v_add_f32 v{232+e}, v{232+e}, v{234+e}'); A(f'v_add_f32 v{236+e}, v{236+e}, v{238+e}')
            A(f'v_add_f32 v{CS+e}, v{232+e}, v{236+e}')
        A(f'{lc}:')
        A('s_waitcnt lgkmcnt(0)')
        for e in range(2):
            A(f'v_add_f32 v{224+e}, v{224+e}, v{226+e}'); A(f'v_add_f32 v{228+e}, v{228+e}, v{230+e}')
        for e in range(2): A(f'v_add_f32 v{224+e}, v{224+e}, v{228+e}')
        for e in range(2): A(f'v_fma_f32 v{224+e}, -v212, v{CS+e}, v{224+e}')
        for e in range(2): A(f'v_mul_f32 v{224+e}, v213, v{224+e}')
        A('v_cvt_pk_bf16_f32 v224, v224, v225')
        A('s_mov_b64 exec, 0xffff')
        if tagged_pass0:
            l1 = self.lab('q1'); l2 = self.lab('q1d')
            A(f's_cmp_lg_u32 {PASS}, 0'); A(f's_cbranch_scc1 {l1}')
            A(f'v_mov_b32 v228, {TQ}'); A('v_and_b32 v227, 0xffff0000, v224'); A('v_lshl_or_b32 v226, v224, 16, v228'); A('v_or_b32 v227, v227, v228')
            A(f'v_lshlrev_b32 v229, 1, {vPub}')
            A(f'buffer_store_dwordx2 v[226:227], v229, {sWS}, {oQ0} offen sc1')
            A(f's_branch {l2}')
            A(f'{l1}:')
        self.pub(f'buffer_store_dword v224, {vPub}, {sWS}, {soff} offen', flag)
        if tagged_pass0: A(f'{l2}:')
        A('s_mov_b64 exec, -1')

    def tr_weights(self, dst, nt, b0, b1):
        for t in range(nt):
            for T, br in ((0, b0), (1, b1)):
                d = dst + 8 * t + 4 * T
                self(f'ds_read_b64_tr_b16 {v(d,2)}, {br} offset:{t*2048}')
                self(f'ds_read_b64_tr_b16 {v(d+2,2)}, {br} offset:{t*2048+256}')
    def tr_addr(self, d0, d1, base):
        A = self
        A(f'v_lshrrev_b32 v222, 4, {L}'); A('v_lshlrev_b32 v223, 9, v222')
        A('v_and_b32 v222, 1, v222'); A('v_lshl_add_u32 v223, v222, 5, v223')
        A(f'v_and_b32 v222, 12, {L}'); A('v_lshl_add_u32 v223, v222, 4, v223')
        A(f'v_and_b32 v222, 3, {L}'); A('v_lshl_add_u32 v223, v222, 3, v223')
        A(f'v_add_u32 {d0}, {base}, v223'); A(f'v_xor_b32 {d1}, 32, {d0}')
    def load_wave_weights(self, dst):
        A = self
        A(f's_lshl_b32 {T0}, {W}, 13'); A(f's_add_u32 {T0}, {T0}, {W_L}'); self.tr_addr('v236', 'v237', T0)
        self.tr_weights(dst, 4, 'v236', 'v237')
    def slice_src(self, dst, stride):
        A = self
        A(f'v_lshrrev_b32 v222, 5, {L}'); A(f'v_and_b32 v223, 3, {L}'); A('v_lshlrev_b32 v222, 1, v222'); A('v_xor_b32 v222, v222, v223')
        A(f'v_lshrrev_b32 v223, 2, {L}'); A(f'v_mul_u32_u24 v223, {stride}, v223'); A(f'v_lshl_add_u32 {dst}, v222, 4, v223')
    def dma_slices(self, srd, vsrc, soff, n, step, lds_base, oob_from=None):
        A = self
        for k in range(n):
            if k % 4 == 0:
                if k == 0: A(f's_mov_b32 m0, {lds_base}')
                else: A('s_add_u32 m0, m0, 4096')
            if oob_from is not None and k == oob_from[0]: A(f's_add_u32 {soff}, {soff}, {oob_from[1]}')
            A(f'buffer_load_dwordx4 {vsrc}, {srd}, {soff} offen offset:{(k%4)*1024} {self.ld} lds')
            if k + 1 < n:
                d = step - 1024 if (k % 4) != 3 else step + 3072
                A(f's_add_u32 {soff}, {soff}, {d}')

    def kv_base(self):
        A = self
        A(f's_lshl_b32 {T3}, {G}, 23'); A(f's_lshl_b32 {T1}, {W}, 18'); A(f's_add_u32 {T3}, {T3}, {T1}')
        A(f's_lshl_b32 {T1}, {J}, 12'); A(f's_add_u32 {T3}, {T3}, {T1}'); A(f's_add_u32 {T3}, {T3}, {28672*256}')
        A(f's_add_u32 {T4}, {T3}, 131072'); A(f's_lshl_b32 {T2}, {W}, 13')
    def v_issue(self):
        A = self
        self.kv_base()
        A(f'v_lshrrev_b32 v222, 4, {L}'); A(f'v_and_b32 v224, 15, {L}'); A('v_lshlrev_b32 v223, 1, v222'); A('v_lshlrev_b32 v225, 8, v222')
        A('v_xor_b32 v223, v223, v224'); A('v_lshl_add_u32 v226, v223, 4, v225'); A('v_xor_b32 v227, 128, v226')
        for T in range(2):
            A(f's_add_u32 m0, {T2}, {V_L + T*4096}')
            if T == 0: A('s_nop 0')
            for n in range(4): A(f'buffer_load_dwordx4 v{226+(n&1)}, {sV}, {T4 if T else T3} offen offset:{n*1024} {self.ld} lds')
    def k_issue(self, rebase):
        A = self
        if rebase: self.kv_base()
        A(f'v_lshrrev_b32 v222, 4, {L}'); A(f'v_and_b32 v224, 15, {L}'); A('v_lshlrev_b32 v225, 8, v222'); A('v_xor_b32 v223, v222, v224')
        A('v_lshl_add_u32 v228, v223, 4, v225')
        for n in range(1, 4): A(f'v_xor_b32 v{228+n}, {64*n}, v228')
        for T in range(2):
            A(f's_add_u32 m0, {T2}, {K_L + T*4096}')
            for n in range(4): A(f'buffer_load_dwordx4 v{228+n}, {sK}, {T4 if T else T3} offen offset:{n*1024} {self.ld} lds')
    def v_frags(self):
        A = self
        A(f'v_lshrrev_b32 v222, 4, {L}'); A(f'v_bfe_u32 v223, {L}, 2, 2'); A('v_lshl_add_u32 v222, v222, 2, v223')
        A('v_and_b32 v223, 7, v222'); A(f's_lshl_b32 {T0}, {W}, 1'); A(f'v_xor_b32 v223, {T0}, v223'); A('v_lshlrev_b32 v223, 5, v223')
        A('v_lshl_add_u32 v222, v222, 8, v223'); A(f'v_and_b32 v223, 3, {L}'); A('v_lshl_add_u32 v222, v223, 3, v222'); A('v_xor_b32 v223, 32, v222')
        for U in range(2):
            for w in range(4):
                d = VF + 16 * U + 4 * w
                A(f'ds_read_b64_tr_b16 {v(d,2)}, v{222+U} offset:{V_L + w*8192}')
                A(f'ds_read_b64_tr_b16 {v(d+2,2)}, v{222+U} offset:{V_L + w*8192 + 4096}')
    def k_frags_regs(self, b):
        A = self
        A(f'v_and_b32 v{b}, 15, {L}'); A(f'v_lshrrev_b32 v{b+1}, 4, {L}'); A(f'v_xor_b32 v{b+1}, v{b+1}, v{b}'); A(f'v_lshlrev_b32 v{b+1}, 4, v{b+1}')
        A(f'v_lshl_add_u32 v{b}, v{b}, 8, v{b+1}'); A(f's_lshl_b32 {T0}, {W}, 13'); A(f'v_add_u32 v{b}, {T0}, v{b}')
        for t in range(1, 4): A(f'v_xor_b32 v{b+t}, {64*t}, v{b}')
        for T in range(2):
            for t in range(4): A(f'ds_read_b128 {v(KF+16*T+4*t,4)}, v{b+t} offset:{K_L + T*4096}')
    def q_load(self): return f'buffer_load_dwordx4 {v(XF,4)}, {vLin}, {sWS}, {oQ} offen sc1'
    def q_share(self):
        self(f'ds_write_b128 {vQXW}, {v(XF,4)}')
    def q_read(self):
        for t in range(4): self(f'ds_read_b128 {v(QB+4*t,4)}, {vQXR} offset:{64*t}')

    def first_q(self):
        A = self
        A('s_waitcnt vmcnt(8)'); A('s_barrier')
        self.stamp('V_landed')
        A(f'v_lshlrev_b32 v238, 5, {L}')
        ld = [f'buffer_load_dwordx4 v[224:227], v238, {sWS}, {oQ0} offen sc1', f'buffer_load_dwordx4 v[228:231], v238, {sWS}, {oQ0} offen offset:16 sc1']
        l0 = self.lab('fq_n0'); A(f's_cmp_lg_u32 {W}, 0'); A(f's_cbranch_scc1 {l0}')
        for t in ld: A(t)
        A(f'{l0}:')
        self.v_frags()
        lb = self.lab('fq_b1'); l1 = self.lab('fq_k'); l2 = self.lab('fq_k2')
        A(f's_cmp_lg_u32 {W}, 0'); A(f's_cbranch_scc1 {l1}')
        A('s_waitcnt vmcnt(2)'); A(f's_branch {l2}')
        A(f'{l1}:'); A('s_waitcnt vmcnt(0)')
        A(f'{l2}:')
        self.stamp('K_landed')
        self.k_frags_regs(232)
        A(f's_cmp_lg_u32 {W}, 0'); A(f's_cbranch_scc1 {lb}')
        lp = self.lab('q0'); lo = self.lab('q0ok')
        A(f's_mov_b32 {CNT}, 0')
        A(f'{lp}:')
        A('s_waitcnt vmcnt(0)')
        A(f'v_mov_b32 v221, {TQ}')
        for k in range(4): A(f'v_bitop3_b32 v{216+k}, v{224+2*k}, v{225+2*k}, v221 bitop3:0x7e')
        A('v_or3_b32 v216, v216, v217, v218'); A('v_or_b32 v216, v216, v219')
        A('v_and_b32 v217, 0xfff0, v216'); A('v_cmp_ne_u32 vcc, 0, v217')
        A(f's_cbranch_vccz {lo}')
        for t in ld: A(t)
        A(f's_add_u32 {CNT}, {CNT}, 1'); A(f's_cmp_gt_u32 {CNT}, {MAXPOLL}'); A('s_cbranch_scc1 L_bail')
        if self.o.sl_q0: A(f's_sleep {self.o.sl_q0}')
        A(f's_branch {lp}')
        A(f'{lo}:')
        A('v_and_b32 v217, 15, v216'); A('v_cmp_ne_u32 vcc, 0, v217'); A('s_cmp_eq_u64 vcc, 0'); A(f's_cselect_b32 {T1}, 1, 0')
        if self.o.force_slow: A(f's_mov_b32 {T1}, 0')
        A(f's_mov_b32 {T0}, 0x07060302')
        for k in range(4): A(f'v_perm_b32 v{XF+k}, v{225+2*k}, v{224+2*k}, {T0}')
        A(f'v_mov_b32 v216, {T1}'); A(f'v_mov_b32 v217, {FX}'); A('ds_write_b32 v217, v216')
        self.q_share()
        A(f'{lb}:')
        A('s_waitcnt lgkmcnt(0)'); A('s_barrier')
        A(f'v_mov_b32 v217, {FX}'); A('ds_read_b32 v216, v217')
        self.q_read()
        A('s_waitcnt lgkmcnt(0)')
        A(f'v_readfirstlane_b32 {FAST}, v216')
    def next_q(self, sleep=0):
        A = self
        lb = self.lab('nq_b1'); A(f's_cmp_lg_u32 {W}, 0'); A(f's_cbranch_scc1 {lb}')
        self.poll([self.q_load()], lambda: self.chk_regs(range(XF, XF + 4), 220), 'q', sleep)
        self.q_share()
        A(f'{lb}:')
        A('s_waitcnt lgkmcnt(0)'); A('s_barrier')
        self.q_read()
        A('s_waitcnt lgkmcnt(0)')

    def s2(self):
        A = self
        ST0, ST1, M, TT = 180, 184, 188, 189
        for t in range(4):
            for T, ST in ((0, ST0), (1, ST1)):
                A(f'v_mfma_f32_16x16x32_bf16 {v(ST,4)}, {v(KF+16*T+4*t,4)}, {v(QB+4*t,4)}, {v(ST,4) if t else 0}')
        A(f'v_max3_f32 v{M}, v{ST0}, v{ST0+1}, v{ST0+2}'); A(f'v_max3_f32 v{TT}, v{ST0+3}, v{ST1}, v{ST1+1}')
        A(f'v_max3_f32 v{M}, v{M}, v{ST1+2}, v{ST1+3}'); A(f'v_max_f32 v{M}, v{M}, v{TT}')
        self.swap_red('v_max_f32', M, TT, 16); self.swap_red('v_max_f32', M, TT, 32)
        A('s_mov_b64 exec, 15'); A(f'ds_write_b32 {vMW}, v{M}'); A('s_mov_b64 exec, -1')
        A('s_waitcnt lgkmcnt(0)'); A('s_barrier')
        A(f'ds_read_b128 {v(192,4)}, {vMR}'); A('s_waitcnt lgkmcnt(0)')
        A(f'v_max3_f32 v{M}, v192, v193, v194'); A(f'v_max_f32 v{M}, v{M}, v195'); A(f'v_mul_f32 v{M}, {CEXP}, v{M}')
        for k in range(8): A(f'v_fma_f32 v{ST0+k}, v{ST0+k}, {CEXP}, -v{M}')
        for k in range(8): A(f'v_exp_f32 v{ST0+k}, v{ST0+k}')
        for k in range(4): A(f'v_cvt_pk_bf16_f32 v{192+k}, v{ST0+2*k}, v{ST0+2*k+1}')
        A(f's_mov_b64 exec, {MASK4}'); A(f'ds_write_b128 {vPW}, {v(192,4)}'); A('s_mov_b64 exec, -1')
        A(f'v_add_f32 v{TT}, v{ST0}, v{ST0+1}'); A(f'v_add_f32 v196, v{ST0+2}, v{ST0+3}'); A(f'v_add_f32 v197, v{ST0+4}, v{ST0+5}'); A(f'v_add_f32 v198, v{ST0+6}, v{ST0+7}')
        A(f'v_add_f32 v{TT}, v{TT}, v196'); A('v_add_f32 v197, v197, v198'); A(f'v_add_f32 v{TT}, v{TT}, v197')
        A(f's_mov_b64 exec, {MASK4}'); A(f'ds_write_b32 {vLW}, v{TT}'); A('s_mov_b64 exec, -1')
        A('s_waitcnt lgkmcnt(0)'); A('s_barrier')
        PB = 192
        for w in range(4): A(f'ds_read_b128 {v(PB+4*w,4)}, {vPR} offset:{w*256}')
        A(f'ds_read_b32 v190, {vLR}')
        A('s_waitcnt lgkmcnt(0)')
        OT0, OT1 = 208, 212
        mf = [f'v_mfma_f32_16x16x32_bf16 {v(OT,4)}, {v(VF+16*U+4*w,4)}, {v(PB+4*w,4)}, {v(OT,4) if w else 0}' for w in range(4) for U, OT in ((0, OT0), (1, OT1))]
        va = ['v_add_f32_dpp v190, v190, v190 row_ror:4 row_mask:0xf bank_mask:0xf', f'v_mov_b32 v{MLQ}, v{M}',
              'v_add_f32_dpp v190, v190, v190 row_ror:8 row_mask:0xf bank_mask:0xf',
              'v_mov_b32 v191, v190', 'v_permlane16_swap_b32 v190, v191', 'v_add_f32 v190, v190, v191',
              'v_mov_b32 v191, v190', 'v_permlane32_swap_b32 v190, v191', f'v_add_f32 v{MLQ+1}, v190, v191']
        self.interleave(mf, va, per=2)
        lm = self.lab('noml')
        A(f's_cmp_lg_u32 {W}, 3'); A(f's_cbranch_scc1 {lm}')
        A('s_mov_b64 exec, 15'); self.pub(f'buffer_store_dwordx4 {v(MLQ,4)}, {vMLp}, {sWS}, {oML} offen'); A('s_mov_b64 exec, -1')
        A(f'{lm}:')
        for k in range(8): self.put_tag(OT0 + k)
        A(f's_mov_b64 exec, {MASK4}')
        self.pub([f'buffer_store_dwordx4 {v(OT0,4)}, {vRSp}, {sWS}, {oRS} offen', f'buffer_store_dwordx4 {v(OT1,4)}, {vRSp}, {sWS}, {oRS} offen offset:16'])
        A('s_mov_b64 exec, -1')

    def common_addr(self):
        A = self
        A(f'v_and_b32 v222, 15, {L}'); A(f'v_lshrrev_b32 v223, 4, {L}')
        A('v_lshlrev_b32 v224, 4, v223'); A('v_and_b32 v225, 3, v222')
        A(f'v_lshl_add_u32 {vXF}, v222, 6, v224')
        A('v_mul_u32_u24 v226, 320, v225'); A('v_add_u32 v226, v226, v224'); A(f'v_add_u32 {vQXR}, {QX}, v226')
        A('v_mul_u32_u24 v226, 320, v223'); A('v_lshl_add_u32 v226, v222, 4, v226'); A(f'v_add_u32 {vQXW}, {QX}, v226')
        A(f's_lshl_b32 {T0}, {W}, 12'); A(f's_lshl_b32 {T1}, {J}, 5'); A(f's_add_u32 {T0}, {T0}, {T1}')
        A('v_lshlrev_b32 v226, 14, v222'); A('v_lshl_add_u32 v226, v223, 10, v226'); A(f'v_add_u32 {vRSp}, {T0}, v226')
        A(f's_lshl_b32 {T1}, {J}, 4'); A('v_lshlrev_b32 v226, 9, v225'); A(f'v_add_u32 {vMLp}, {T1}, v226')
        A(f's_lshl_b32 {T0}, {W}, 2'); A(f's_add_u32 {T0}, {T0}, {MX}'); A('v_lshlrev_b32 v226, 4, v225'); A(f'v_add_u32 {vMW}, {T0}, v226')
        A(f'v_add_u32 {vMR}, {MX}, v226')
        A('v_lshlrev_b32 v227, 6, v225'); A('v_add_u32 v226, v227, v224')
        A(f'v_add_u32 {vPR}, {PX}, v226'); A(f's_lshl_b32 {T0}, {W}, 8'); A(f'v_add_u32 {vPW}, {T0}, {vPR}')
        A(f's_lshl_b32 {T0}, {W}, 4'); A(f's_add_u32 {T1}, {T0}, {LX}'); A('v_lshl_add_u32 v228, v223, 2, v227'); A(f'v_add_u32 {vLW}, {T1}, v228')
        A(f'v_and_b32 v228, 60, {L}'); A('v_add_u32 v228, v228, v227'); A(f'v_add_u32 {vLR}, {LX}, v228')
        A(f's_lshl_b64 {MGRP}, 0xffff, {T0}')
        A(f's_lshl_b32 {T0}, {W}, 7'); A(f's_add_u32 {T0}, {T0}, {RED_A}'); A('v_lshlrev_b32 v226, 2, v222'); A(f'v_add_u32 {vRedW}, {T0}, v226')
        A('v_lshlrev_b32 v226, 3, v222'); A(f'v_add_u32 {vRedR}, {RED_A}, v226')
        A('s_mov_b32 s8, 0x000f000f'); A('s_mov_b32 s9, 0x000f000f')
        A(f's_mov_b32 {CEXP}, 0x3e0293ee')
        A(f's_lshl_b32 {T0}, {G}, 10')
        for r, off in ((oQ, OFF_Q), (oO, OFF_O), (oX1, OFF_X1), (oGU, OFF_GU), (oX2, OFF_X2)): A(f's_add_u32 {r}, {T0}, {off}')
        A(f's_lshl_b32 {T0}, {G}, 11'); A(f's_add_u32 {oML}, {T0}, {OFF_ML}')
        A(f's_lshl_b32 {T0}, {G}, 16'); A(f's_add_u32 {oRS}, {T0}, {OFF_RS}')
        A(f's_mov_b32 {oC1}, {OFF_C1}'); A(f's_mov_b32 {oC2}, {OFF_C2}')
        for k in (4, 5, 6, 7, 8):
            A(f's_mov_b32 s{srd_lo(k)+2}, {SIZES[k]}'); A(f's_mov_b32 s{srd_lo(k)+3}, 0x20000')
        A(f's_mov_b32 {MASK12}, 0xfff')
        A('s_waitcnt lgkmcnt(0)')
        A(f's_add_u32 {TAG32}, {TAG32}, 1'); A(f's_and_b32 {T0}, {TAG32}, 0xfff'); A(f'v_mov_b32 {vTAG}, {T0}')
        A(f's_lshl_b32 {TQ}, {T0}, 4'); A(f's_or_b32 {TQ}, {TQ}, {XCC}')
        A(f's_and_b32 {T0}, {TAG32}, 0xfffffff0'); A(f's_or_b32 {T0}, {T0}, {XCC}')
        A(f'v_mov_b32 v{MLQ+2}, {TAG32}'); A(f'v_mov_b32 v{MLQ+3}, {T0}')
        A(f's_lshl_b32 {T0}, {G}, 11'); A(f's_add_u32 {oQ0}, {T0}, {OFF_Q0T}')

    def next_pass(self):
        A = self
        for r in (oQ, oO, oX1, oGU): A(f's_add_u32 {r}, {r}, 8192')
        A(f's_add_u32 {oML}, {oML}, 16384')
        A(f's_add_u32 {oRS}, {oRS}, 524288'); A(f's_add_u32 {oC1}, {oC1}, 131072'); A(f's_add_u32 {oC2}, {oC2}, 262144')
        A(f's_mov_b32 {PASS}, 1')

    def small_clear(self):
        A = self; l = self.lab('noclr')
        A(f's_cmp_lg_u32 {W}, 3'); A(f's_cbranch_scc1 {l}')
        for k in range(4): A(f'v_mov_b32 v{232+k}, -1')
        A(f'v_lshrrev_b32 v236, 2, {L}'); A(f'v_and_b32 v237, 3, {L}'); A('v_lshlrev_b32 v236, 13, v236'); A('v_lshl_add_u32 v236, v237, 4, v236')
        A(f's_lshl_b32 {T0}, {G}, 10'); A(f's_lshl_b32 {T1}, {R}, 6'); A(f's_add_u32 {T0}, {T0}, {T1}')
        A('s_mov_b32 exec_lo, -1'); A('s_mov_b32 exec_hi, 15')
        A(f'buffer_store_dwordx4 {v(232,4)}, v236, {sWS}, {T0} offen sc1')
        A('s_mov_b64 exec, -1')
        A(f'{l}:')
    def qpre(self):
        A = self
        A(f's_lshl_b32 {T0}, {J}, 17'); A(f's_lshl_b32 {T1}, {W}, 15'); A(f's_add_u32 {T0}, {T0}, {T1}'); A(f's_lshl_b32 {T1}, {G}, 10'); A(f's_add_u32 {T0}, {T0}, {T1}')
        A(f's_mov_b32 m0, {DUM_L}')
        for k in range(4):
            A(f'buffer_load_dwordx4 {vLin}, {sWQ}, {T0} offen {self.o.qpre_flag} lds')
            if k < 3: A(f's_add_u32 {T0}, {T0}, 8192')
    def code_prefetch(self, lo, hi, n):
        if not self.o.codepf: return
        A = self; l = self.lab('nopf'); pc = self.lab('pc')
        A(f's_cmp_lg_u32 {W}, 2'); A(f's_cbranch_scc1 {l}')
        A('s_getpc_b64 s[10:11]'); A(f'{pc}:')
        A(f's_sub_u32 s10, s10, {pc}-{lo}'); A('s_subb_u32 s11, s11, 0')
        A(f'v_lshlrev_b32 v238, 6, {L}')
        for k in range(n):
            A(f'v_min_u32 v239, {hi}-{lo}-4, v238'); A('global_load_dword v255, v239, s[10:11]')
            if k + 1 < n: A('v_add_u32 v238, 4096, v238')
        A(f'{l}:')
    def w2_issue(self):
        A = self
        self.slice_src('v235', 1024)
        A(f's_mul_i32 {T0}, {G}, {224*1024}'); A(f's_lshl_b32 {T1}, {W}, 16'); A(f's_add_u32 {T0}, {T0}, {T1}'); A(f's_lshl_b32 {T1}, {R}, 6'); A(f's_add_u32 {T0}, {T0}, {T1}')
        A(f's_lshl_b32 {T1}, {W}, 12'); A(f's_add_u32 {T1}, {T1}, {W2_L}')
        A(f's_cmp_eq_u32 {W}, 3'); A(f's_cselect_b32 {T2}, 0x10000000, 0')
        self.dma_slices(sW2, 'v235', T0, 4, 16 * 1024, T1, oob_from=(2, T2))

    def build(self):
        A = self
        A('s_cmp_ge_u32 s2, 256'); A('s_cbranch_scc1 L_exit')
        if self.o.stamps or self.o.spin: A(('s_memtime' if self.o.cyc else 's_memrealtime') + ' s[92:93]')
        for k, off in ((3, 24), (2, 16), (1, 8), (10, 88), (0, 0)): A(f's_load_dwordx2 s[{srd_lo(k)}:{srd_lo(k)+1}], s[0:1], {off}')
        A(f'v_and_b32 {L}, 63, v0'); A('v_lshrrev_b32 v222, 6, v0'); A(f's_and_b32 {G}, s2, 7'); A(f'v_readfirstlane_b32 {W}, v222')
        A(f's_lshr_b32 {J}, s2, 3'); A(f's_and_b32 {R}, {J}, 15'); A(f'v_lshlrev_b32 {vLin}, 4, {L}')
        for k in (3, 2, 1, 10, 0):
            A(f's_mov_b32 s{srd_lo(k)+2}, {SIZES[k]}'); A(f's_mov_b32 s{srd_lo(k)+3}, 0x20000')
        A(f's_getreg_b32 {XCC}, hwreg(HW_REG_XCC_ID, 0, 4)')
        A(f's_mov_b32 {FAST}, 0'); A(f's_mov_b32 {FASTA}, 0'); A(f's_mov_b32 {PASS}, 0')
        if self.o.stamps: A(f'v_mov_b32 {vST}, 0')
        A('s_waitcnt lgkmcnt(0)')
        if self.o.stamps:
            A('s_mov_b32 m0, 63'); A(f'v_writelane_b32 {vST}, s92, m0')
        A(f's_load_dword {TAG32}, s[80:81], {OFF_EPOCH}')
        for k, off in ((4, 32), (5, 48), (6, 56), (7, 64), (8, 72)): A(f's_load_dwordx2 s[{srd_lo(k)}:{srd_lo(k)+1}], s[0:1], {off}')
        A(f's_cmp_ge_u32 {J}, 16'); A('s_cbranch_scc1 L_F')
        self.build_w()
        self.build_f()
        A('L_bail:')
        self.end()
        A('L_exit:'); A('s_endpgm')

    def build_w(self):
        A = self; o = self.o
        A('L_W:')
        self.qpre()
        self.small_clear()
        self.code_prefetch('L_W', 'L_F', 2)
        A(f'v_and_b32 v222, 15, {L}'); A(f'v_lshrrev_b32 v223, 4, {L}'); A('v_lshlrev_b32 v223, 4, v223'); A(f'v_lshl_add_u32 {vXF}, v222, 6, v223')
        A(f'v_and_b32 v222, 7, {L}'); A(f'v_lshrrev_b32 v223, 5, {L}'); A('v_lshlrev_b32 v223, 2, v223'); A('v_lshl_add_u32 v222, v222, 3, v223')
        A(f's_lshl_b32 {T0}, {R}, 6'); A(f'v_add_u32 {vXp}, {T0}, v222')
        A(f'buffer_load_dwordx4 {v(XF,4)}, {vXF}, {sX}, 0 offen'); A(f'buffer_load_dword {vRES}, {vXp}, {sX}, 0 offen')
        self.slice_src('v235', 8192)
        A(f's_lshl_b32 {T0}, {W}, 20'); A(f's_lshl_b32 {T1}, {G}, 10'); A(f's_add_u32 {T0}, {T0}, {T1}'); A(f's_lshl_b32 {T1}, {R}, 6'); A(f's_add_u32 {T0}, {T0}, {T1}')
        A(f's_lshl_b32 {T1}, {W}, 13'); A(f's_add_u32 {T1}, {T1}, {W_L}')
        if o.waitq: A('s_waitcnt vmcnt(2)')
        self.stamp('qpre_landed')
        self.dma_slices(sWQ, 'v235', T0, 8, 16 * 8192, T1)
        self.v_issue()
        self.stamp('issued')
        self.common_addr()
        A(f'v_and_b32 v222, 31, {L}'); A(f'v_lshrrev_b32 v223, 5, {L}')
        A(f's_lshl_b32 {T0}, {R}, 12'); A(f's_lshl_b32 {T1}, {W}, 10'); A(f's_add_u32 {T0}, {T0}, {T1}')
        A('v_lshlrev_b32 v224, 5, v222'); A('v_lshl_add_u32 v224, v223, 4, v224'); A(f'v_add_u32 {vRSg}, {T0}, v224')
        A(f's_lshr_b32 {T0}, {R}, 2'); A(f's_lshl_b32 {T0}, {T0}, 9'); A('v_lshlrev_b32 v224, 4, v222'); A(f'v_add_u32 {vMLg}, {T0}, v224')
        A(f's_lshl_b32 {T0}, {R}, 6'); A(f's_lshl_b32 {T1}, {W}, 3'); A(f's_add_u32 {T0}, {T0}, {T1}')
        A('v_lshlrev_b32 v224, 5, v223'); A(f'v_bfe_u32 v225, {L}, 4, 1'); A('v_lshl_add_u32 v224, v225, 2, v224'); A(f'v_add_u32 {vOp}, {T0}, v224')
        A(f'v_lshrrev_b32 v223, 3, {L}'); A(f'v_and_b32 v224, 7, {L}'); A('v_lshlrev_b32 v225, 4, v224')
        A(f's_lshl_b32 {T0}, {R}, 10'); A(f's_lshl_b32 {T1}, {G}, 7'); A(f's_add_u32 {T1}, {T1}, {T0}')
        A('v_lshl_add_u32 v226, v223, 14, v225'); A(f'v_add_u32 {vCp}, {T1}, v226')
        A(f's_lshl_b32 {T1}, {G}, 14'); A(f's_add_u32 {T1}, {T1}, {T0}'); A('v_lshl_add_u32 v226, v223, 7, v225'); A(f'v_add_u32 {vCg}, {T1}, v226')
        A(f'v_add_u32 {vRedR4}, {RED_B}, v225')
        A(f's_lshl_b32 {T0}, {R}, 11'); A(f's_and_b32 {T2}, {W}, 1'); A(f's_lshl_b32 {T1}, {T2}, 10'); A(f's_add_u32 {T0}, {T0}, {T1}')
        A(f's_lshl_b32 {T1}, {G}, 15'); A(f's_add_u32 {T1}, {T1}, {T0}')
        A('v_lshlrev_b32 v226, 7, v223'); A('v_lshl_add_u32 v226, v224, 3, v226'); A(f'v_add_u32 {vC2g}, {T1}, v226')
        A(f's_lshl_b32 {T1}, {R}, 6'); A(f's_lshl_b32 {T2}, {T2}, 5'); A(f's_add_u32 {T1}, {T1}, {T2}'); A('v_lshlrev_b32 v226, 2, v224'); A(f'v_add_u32 {vX8p}, {T1}, v226')
        A(f'v_and_b32 v222, 15, {L}'); A(f'v_lshrrev_b32 v223, 4, {L}'); A('v_lshlrev_b32 v224, 2, v222')
        A(f's_lshl_b32 {T1}, {G}, 7'); A(f's_add_u32 {T1}, {T1}, {T0}'); A('v_lshl_add_u32 v225, v223, 15, v224'); A(f'v_add_u32 {vC2p}, {T1}, v225')
        A(f's_lshl_b32 {T0}, {R}, 6'); A(f'v_add_u32 {vPub}, {T0}, v224')
        A(f'v_min_u32 {vGU}, 223, v0'); A(f'v_lshlrev_b32 {vGU}, 1, {vGU}')
        A(f'v_lshlrev_b32 {vHW}, 1, v0'); A(f'v_add_u32 {vHW}, {HX}, {vHW}')
        A('v_and_b32 v224, 3, v222'); A('v_lshlrev_b32 v224, 6, v224'); A('v_lshl_add_u32 v224, v223, 4, v224'); A(f'v_add_u32 {vHR}, {HX}, v224')
        A('s_waitcnt vmcnt(8)')
        self.stamp('wq_landed')
        self.load_wave_weights(WA)
        self.colsum()
        A('s_branch L_W_S1')
        A('L_W_NEXT:')
        self.poll([f'buffer_load_dwordx4 {v(XF,4)}, {vXF}, {sWS}, {oX2} offen sc1', f'buffer_load_dword {vRES}, {vXp}, {sWS}, {oX2} offen sc1'],
                  lambda: (A(f'v_max3_u32 v220, v{XF}, v{XF+1}, {vRES}'), A(f'v_max3_u32 v220, v220, v{XF+2}, v{XF+3}'), A('v_cmp_eq_u32 vcc, -1, v220')), 'x2', o.sl_x2)
        self.stamp('x_ok')
        A('L_W_S1:')
        self.gemv_core(WA, RED_A, stats=True)
        A('s_waitcnt lgkmcnt(0)'); A('s_barrier')
        l = self.lab('s1w'); A(f's_cmp_lg_u32 {W}, 0'); A(f's_cbranch_scc1 {l}')
        self.ln_finalize_publish(oQ, FASTA, True)
        A(f'{l}:')
        self.stamp('q_pub')
        l1 = self.lab('p1q'); l2 = self.lab('s2')
        A(f's_cmp_lg_u32 {PASS}, 0'); A(f's_cbranch_scc1 {l1}')
        A('s_barrier')
        self.k_issue(True)
        self.first_q()
        A(f's_branch {l2}')
        A(f'{l1}:')
        self.next_q()
        A(f'{l2}:')
        self.stamp('q_ok')
        self.s2()
        self.stamp('rs_pub')
        def chk_rs():
            self.chk_tag([164, 165, 166, 167], 220)
            A(f'v_xor_b32 v221, {TAG32}, v170'); A(f'v_bitop3_b32 v222, v171, {TAG32}, -16 bitop3:0x28'); A('v_or3_b32 v220, v220, v221, v222'); A('v_cmp_ne_u32 vcc, 0, v220')
        self.poll([f'buffer_load_dwordx4 v[164:167], {vRSg}, {sWS}, {oRS} offen sc1', f'buffer_load_dwordx4 v[168:171], {vMLg}, {sWS}, {oML} offen sc1'], chk_rs, 'rs')
        self.stamp('rs_ok')
        l = self.lab('wo0'); A(f's_cmp_lg_u32 {PASS}, 0'); A(f's_cbranch_scc1 {l}')
        A('v_and_b32 v220, 15, v171'); A(f'v_cmp_ne_u32 vcc, {XCC}, v220'); A('s_cmp_eq_u64 vcc, 0'); A(f's_cselect_b32 {FASTA}, 1, 0')
        if self.o.force_slow: A(f's_mov_b32 {FASTA}, 0')
        self.slice_src('v235', 1024)
        A(f's_lshl_b32 {T0}, {G}, 19'); A(f's_lshl_b32 {T1}, {W}, 17'); A(f's_add_u32 {T0}, {T0}, {T1}'); A(f's_lshl_b32 {T1}, {R}, 6'); A(f's_add_u32 {T0}, {T0}, {T1}')
        A(f's_lshl_b32 {T1}, {W}, 13'); A(f's_add_u32 {T1}, {T1}, {W_L}')
        self.dma_slices(sWO, 'v235', T0, 8, 16 * 1024, T1)
        A(f'{l}:')
        M, TT, Wt, Lr = 172, 173, 174, 175
        A(f'v_max_f32_dpp v{M}, v168, v168 row_ror:1 row_mask:0xf bank_mask:0xf')
        self.strip_tag(164); self.strip_tag(165)
        self.dpp('v_max_f32', M, 2)
        self.strip_tag(166); self.strip_tag(167)
        self.dpp('v_max_f32', M, 4); self.dpp('v_max_f32', M, 8)
        self.swap_red('v_max_f32', M, TT, 16)
        A(f'v_sub_f32 v{Wt}, v168, v{M}'); A(f'v_exp_f32 v{Wt}, v{Wt}')
        for k in range(4): A(f'v_mul_f32 v{164+k}, v{Wt}, v{164+k}')
        A(f'v_mul_f32 v{Lr}, v{Wt}, v169')
        A('v_permlane16_swap_b32 v164, v166'); A('v_permlane16_swap_b32 v165, v167')
        A(f'v_mov_b32 v{TT}, v{Lr}'); A('v_add_f32 v164, v164, v166'); A('v_add_f32 v165, v165, v167')
        A(f'v_permlane16_swap_b32 v{Lr}, v{TT}'); A(f'v_add_f32 v{Lr}, v{Lr}, v{TT}')
        for ror in (8, 4, 2, 1):
            self.dpp('v_add_f32', Lr, ror); self.dpp('v_add_f32', 164, ror); self.dpp('v_add_f32', 165, ror)
        A(f'v_rcp_f32 v{Lr}, v{Lr}'); A(f'v_mul_f32 v164, v{Lr}, v164'); A(f'v_mul_f32 v165, v{Lr}, v165')
        A('v_cvt_pk_bf16_f32 v164, v164, v165')
        A('s_mov_b32 exec_lo, 0x00010001'); A('s_mov_b32 exec_hi, 0x00010001')
        self.pub(f'buffer_store_dword v164, {vOp}, {sWS}, {oO} offen')
        A('s_mov_b64 exec, -1')
        self.stamp('o_pub')
        self.poll([f'buffer_load_dwordx4 {v(XF,4)}, {vXF}, {sWS}, {oO} offen sc1'], lambda: self.chk_regs(range(XF, XF + 4), 220), 'o')
        self.stamp('o_ok')
        l = self.lab('wo1'); A(f's_cmp_lg_u32 {PASS}, 0'); A(f's_cbranch_scc1 {l}')
        self.load_wave_weights(WB)
        A('s_waitcnt lgkmcnt(0)')
        A(f'{l}:')
        self.gemv_core(WB, RED_B)
        A('s_waitcnt lgkmcnt(0)'); A('s_barrier')
        l5 = self.lab('w_s5'); A(f's_cmp_lg_u32 {W}, 0'); A(f's_cbranch_scc1 {l5}')
        for w in range(4): A(f'ds_read_b128 {v(224+4*w,4)}, {vRedR4} offset:{w*128}')
        A('s_waitcnt lgkmcnt(0)')
        for e in range(4):
            A(f'v_add_f32 v{224+e}, v{224+e}, v{228+e}'); A(f'v_add_f32 v{232+e}, v{232+e}, v{236+e}')
        for e in range(4): A(f'v_add_f32 v{224+e}, v{224+e}, v{232+e}')
        for e in range(4): self.put_tag(224 + e)
        A(f'buffer_store_dwordx4 {v(224,4)}, {vCp}, {sWS}, {oC1} offen sc1')
        self.stamp('c1_pub')
        self.delay(o.d1)
        self.poll([f'buffer_load_dwordx4 {v(164,4)}, {vCg}, {sWS}, {oC1} offen sc1'],
                  lambda: (self.chk_tag(range(164, 168), 220), A('v_cmp_ne_u32 vcc, 0, v220')), 'c1')
        self.stamp('c1_ok')
        for e in range(4): self.strip_tag(164 + e)
        A('v_permlane32_swap_b32 v164, v166'); A('v_permlane32_swap_b32 v165, v167')
        A('v_add_f32 v164, v164, v166'); A('v_add_f32 v165, v165, v167')
        A('v_mov_b32 v168, v164'); A('v_mov_b32 v169, v165')
        A('v_permlane16_swap_b32 v164, v168'); A('v_permlane16_swap_b32 v165, v169')
        A('v_add_f32 v164, v164, v168'); A('v_add_f32 v165, v165, v169')
        A(f'v_lshlrev_b32 v168, 16, {vRES}'); A(f'v_and_b32 v169, 0xffff0000, {vRES}')
        self.dpp('v_add_f32', 164, 8); self.dpp('v_add_f32', 165, 8)
        A('v_add_f32 v164, v164, v168'); A('v_add_f32 v165, v165, v169')
        A('v_cvt_pk_bf16_f32 v164, v164, v165')
        A('s_mov_b32 exec_lo, 0xff'); A('s_mov_b32 exec_hi, 0xff')
        self.pub(f'buffer_store_dword v164, {vXp}, {sWS}, {oX1} offen', FASTA)
        A('s_mov_b64 exec, -1')
        self.stamp('x1_pub')
        A(f'{l5}:')
        A('s_barrier')
        l = self.lab('now2'); A(f's_cmp_lg_u32 {PASS}, 0'); A(f's_cbranch_scc1 {l}')
        self.w2_issue()
        A('s_waitcnt vmcnt(0)'); A('s_barrier')
        self.stamp('w2_landed')
        A(f's_cmp_ge_u32 {W}, 2'); A(f's_cbranch_scc1 {l}')
        A(f's_mov_b32 {T0}, {W2_L}'); self.tr_addr('v236', 'v237', T0)
        A(f's_lshl_b32 {T0}, {W}, 5'); A(f'v_xor_b32 v236, {T0}, v236')
        for t in range(7):
            A(f'ds_read_b64_tr_b16 a[{4*t}:{4*t+1}], v236 offset:{t*2048}'); A(f'ds_read_b64_tr_b16 a[{4*t+2}:{4*t+3}], v236 offset:{t*2048+256}')
        A('s_waitcnt lgkmcnt(0)')
        A(f'{l}:')
        self.poll([f'buffer_load_ushort v164, {vGU}, {sWS}, {oGU} offen sc1', f'buffer_load_ushort v165, {vGU}, {sWS}, {oGU} offen offset:512 sc1',
                   f'buffer_load_dword {vRES8}, {vX8p}, {sWS}, {oX1} offen sc1'],
                  lambda: (A('v_max_u32 v166, v164, v165'), A(f'v_cmp_eq_u32 s[12:13], -1, {vRES8}'), A('v_cmp_eq_u32 vcc, 0xffff, v166'), A('s_or_b64 vcc, vcc, s[12:13]')), 'gu', o.sl_gu)
        self.stamp('gu_ok')
        A('v_lshlrev_b32 v164, 16, v164'); A('v_lshlrev_b32 v165, 16, v165')
        A('v_mul_f32 v166, 0xbfb8aa3b, v164'); A('v_mul_f32 v164, v164, v165'); A('v_exp_f32 v166, v166'); A('v_add_f32 v166, 1.0, v166'); A('v_rcp_f32 v166, v166')
        A('v_mul_f32 v164, v164, v166'); A('v_cvt_pk_bf16_f32 v164, v164, v164')
        A(f'ds_write_b16 {vHW}, v164'); A('s_waitcnt lgkmcnt(0)'); A('s_barrier')
        A(f's_cmp_ge_u32 {W}, 2'); A('s_cbranch_scc1 L_W_TAIL')
        A(f'ds_read_b128 {v(164,4)}, {vHR}'); A(f'ds_read_b128 {v(168,4)}, {vHR} offset:256'); A('s_waitcnt lgkmcnt(0)')
        for r in range(4): A(f'v_mfma_f32_16x16x32_bf16 {v(ACC+4*r,4)}, {v(164,4)}, a[{4*r}:{4*r+3}], 0')
        for r in range(3): A(f'v_mfma_f32_16x16x32_bf16 {v(ACC+4*r,4)}, {v(168,4)}, a[{16+4*r}:{19+4*r}], {v(ACC+4*r,4)}')
        A(f'v_add_f32 v216, v{ACC+15}, v{ACC}'); A(f'v_add_f32 v217, v{ACC+5}, v{ACC+10}'); A('v_add_f32 v216, v216, v217')
        self.put_tag(216)
        lp1 = self.lab('c2p1'); lp2 = self.lab('c2d')
        A(f's_cmp_lg_u32 {PASS}, 0'); A(f's_cbranch_scc1 {lp1}')
        A(f's_add_u32 {T0}, {oC2}, 131072')
        A(f'buffer_store_dword v216, {vC2p}, {sWS}, {oC2} offen sc1'); A(f'buffer_store_dword v216, {vC2p}, {sWS}, {T0} offen sc1')
        A(f's_branch {lp2}')
        A(f'{lp1}:')
        A('s_mov_b64 exec, 0xffff'); A(f'buffer_store_dword v216, {vC2p}, {sWS}, {oC2} offen sc1'); A('s_mov_b64 exec, -1')
        self.stamp('c2_pub')
        A(f's_cmp_lg_u32 {G}, 0'); A('s_cbranch_scc1 L_W_END')
        A(f'{lp2}:')
        self.stamp('c2_pub')
        self.delay(o.d2)
        self.poll([f'buffer_load_dwordx2 v[164:165], {vC2g}, {sWS}, {oC2} offen sc1'],
                  lambda: (self.chk_tag([164, 165], 220), A('v_cmp_ne_u32 vcc, 0, v220')), 'c2')
        self.stamp('c2_ok')
        self.strip_tag(164); self.strip_tag(165)
        A(f'v_lshlrev_b32 v170, 16, {vRES8}'); A(f'v_and_b32 v171, 0xffff0000, {vRES8}')
        self.dpp('v_add_f32', 164, 8); self.dpp('v_add_f32', 165, 8)
        A('v_mov_b32 v168, v164'); A('v_mov_b32 v169, v165')
        A('v_permlane16_swap_b32 v164, v168'); A('v_permlane16_swap_b32 v165, v169')
        A('v_add_f32 v164, v164, v168'); A('v_add_f32 v165, v165, v169')
        A('v_mov_b32 v168, v164'); A('v_mov_b32 v169, v165')
        A('v_permlane32_swap_b32 v164, v168'); A('v_permlane32_swap_b32 v165, v169')
        A('v_add_f32 v164, v164, v168'); A('v_add_f32 v165, v165, v169')
        A('v_add_f32 v164, v164, v170'); A('v_add_f32 v165, v165, v171')
        A('v_cvt_pk_bf16_f32 v164, v164, v165')
        A('s_mov_b64 exec, 0xff')
        lo = self.lab('out'); A(f's_cmp_lg_u32 {PASS}, 0'); A(f's_cbranch_scc1 {lo}')
        self.pub(f'buffer_store_dword v164, {vX8p}, {sWS}, {oX2} offen')
        A('s_mov_b64 exec, -1')
        self.stamp('x2_pub')
        A('L_W_TAIL:')
        A(f's_cmp_lg_u32 {PASS}, 0'); A('s_cbranch_scc1 L_W_END')
        self.next_pass()
        A('s_branch L_W_NEXT')
        A(f'{lo}:')
        A(f'buffer_store_dword v164, {vX8p}, {sOUT}, 0 offen')
        A(f's_or_b32 {T0}, {R}, {W}'); A(f's_cmp_lg_u32 {T0}, 0'); A('s_cbranch_scc1 L_W_END1')
        A(f'v_mov_b32 v168, {TAG32}'); A(f'v_mov_b32 v169, {OFF_EPOCH}'); A('s_mov_b64 exec, 1')
        A(f'buffer_store_dword v168, v169, {sWS}, 0 offen')
        A('L_W_END1:')
        A('s_mov_b64 exec, -1')
        self.stamp('x2_pub')
        A('L_W_END:')
        self.end()

    def build_f(self):
        A = self; o = self.o
        A('L_F:')
        self.qpre()
        self.code_prefetch('L_F', 'L_bail', 1)
        self.v_issue()
        self.k_issue(False)
        self.stamp('issued')
        self.common_addr()
        A(f'v_and_b32 v222, 15, {L}'); A('v_lshlrev_b32 v224, 2, v222')
        A(f's_and_b32 {T0}, {R}, 1'); A(f's_lshl_b32 {T0}, {T0}, 9'); A(f's_lshr_b32 {T1}, {R}, 1'); A(f's_lshl_b32 {T1}, {T1}, 6'); A(f's_add_u32 {T0}, {T0}, {T1}')
        A(f'v_add_u32 {vPub}, {T0}, v224')
        self.first_q()
        l = self.lab('nowo'); A(f's_cmp_ge_u32 {R}, 14'); A(f's_cbranch_scc1 {l}')
        A(f's_add_u32 {T1}, {G}, 1'); A(f's_lshl_b32 {T1}, {T1}, 19')
        A('s_mov_b32 s84, s56'); A('s_mov_b32 s85, s57'); A(f's_mov_b32 s86, {T1}'); A('s_mov_b32 s87, 0x20000')
        A(f's_lshl_b32 {T1}, {R}, 2'); A(f's_add_u32 {T1}, {T1}, {W}'); A(f's_mul_i32 {T1}, {T1}, 10240'); A(f's_lshl_b32 {T0}, {G}, 19'); A(f's_add_u32 {T0}, {T0}, {T1}')
        A(f's_mov_b32 m0, {DUM_L}')
        for k in range(10):
            A(f'buffer_load_dwordx4 {vLin}, {sWF}, {T0} offen {self.ld} lds')
            if k < 9: A(f's_add_u32 {T0}, {T0}, 1024')
        A(f'{l}:')
        A('s_branch L_F_S2')
        A('L_F_NEXT:')
        self.next_q(o.sl_q)
        A('L_F_S2:')
        self.stamp('q_ok')
        self.s2()
        self.stamp('rs_pub')
        lsp = self.lab('spare'); A(f's_cmp_ge_u32 {R}, 14'); A(f's_cbranch_scc1 {lsp}')
        l = self.lab('late'); A(f's_cmp_lg_u32 {PASS}, 0'); A(f's_cbranch_scc1 {l}')
        A(f's_and_b32 {T0}, {R}, 1'); A(f's_cmp_eq_u32 {T0}, 0')
        A('s_cselect_b32 s84, s60, s64'); A('s_cselect_b32 s85, s61, s65'); A('s_mov_b32 s86, 1835008'); A('s_mov_b32 s87, 0x20000')
        self.slice_src('v235', 3584)
        A(f's_mul_i32 {T0}, {W}, {128*3584}'); A(f's_mul_i32 {T1}, {G}, 448'); A(f's_add_u32 {T0}, {T0}, {T1}')
        A(f's_lshr_b32 {T1}, {R}, 1'); A(f's_lshl_b32 {T1}, {T1}, 6'); A(f's_add_u32 {T0}, {T0}, {T1}')
        A(f's_lshl_b32 {T1}, {W}, 13'); A(f's_add_u32 {T1}, {T1}, {W_L}')
        self.dma_slices(sWF, 'v235', T0, 8, 16 * 3584, T1)
        A('s_waitcnt vmcnt(0)')
        self.stamp('f1_landed')
        self.load_wave_weights(WA)
        self.colsum()
        A(f'{l}:')
        self.poll([f'buffer_load_dwordx4 {v(XF,4)}, {vXF}, {sWS}, {oX1} offen sc1'], lambda: self.chk_regs(range(XF, XF + 4), 220), 'x1', o.sl_x1)
        self.stamp('x1_ok')
        self.gemv_core(WA, RED_A, stats=True)
        A('s_waitcnt lgkmcnt(0)'); A('s_barrier')
        l = self.lab('s6w'); A(f's_cmp_lg_u32 {W}, 0'); A(f's_cbranch_scc1 {l}')
        self.ln_finalize_publish(oGU, FAST)
        self.stamp('gu_pub')
        A(f'{l}:')
        A('L_F_TAIL:')
        A(f's_cmp_lg_u32 {PASS}, 0'); A('s_cbranch_scc1 L_F_END')
        self.next_pass()
        A('s_branch L_F_NEXT')
        A(f'{lsp}:')
        A(f's_cmp_lg_u32 {PASS}, 0'); A('s_cbranch_scc1 L_F_END')
        A(f's_sub_u32 {T1}, {R}, 14'); A(f's_lshl_b32 {T1}, {T1}, 2'); A(f's_add_u32 {T1}, {T1}, {W}'); A(f's_mul_i32 {T1}, {T1}, 28672')
        A(f's_mul_i32 {T0}, {G}, {224*1024}'); A(f's_add_u32 {T0}, {T0}, {T1}'); A(f's_mov_b32 m0, {DUM_L}'); A(f's_mov_b32 {T2}, 0')
        lw = self.lab('w2pre'); A(f'{lw}:')
        for k in range(4):
            A(f'buffer_load_dwordx4 {vLin}, {sW2}, {T0} offen {self.ld} lds'); A(f's_add_u32 {T0}, {T0}, 1024')
        A(f's_add_u32 {T2}, {T2}, 1'); A(f's_cmp_lt_u32 {T2}, 7'); A(f's_cbranch_scc1 {lw}')
        A('s_branch L_F_TAIL')
        A('L_F_END:')
        self.end()

def emit(opt):
    k = K(opt); k.build()
    body = k.a.finalize()
    head = open('cdna_kernels/' + NAME + '.s.ref').read().split('; Override launch')[0]
    txt = head + f"""; Override launch geometry by editing the next line. Harness parses it; keep it on one line.
; @launch grid=(256,1,1) block=(256,1,1) lds={LDS_SIZE}
.amdgcn_target "amdgcn-amd-amdhsa--gfx950"
.text
.globl {NAME}_kernel
.p2align 8
.type {NAME}_kernel,@function
{NAME}_kernel:
{body}
.section .rodata,"a"
.p2align 6
.amdhsa_kernel {NAME}_kernel
  .amdhsa_next_free_vgpr 288
  .amdhsa_next_free_sgpr 102
  .amdhsa_accum_offset 256
  .amdhsa_group_segment_fixed_size 0
  .amdhsa_kernarg_size 96
  .amdhsa_user_sgpr_count 2
  .amdhsa_user_sgpr_kernarg_segment_ptr 1
  .amdhsa_system_sgpr_workgroup_id_x 1
  .amdhsa_float_denorm_mode_32 3
.end_amdhsa_kernel
"""
    return txt, k

def options(argv=None):
    p = argparse.ArgumentParser()
    p.add_argument('-o', default='cdna_kernels/' + NAME + '.s')
    p.add_argument('--stamps', action='store_true'); p.add_argument('--no-nt', dest='nt', action='store_false')
    p.add_argument('--no-codepf', dest='codepf', action='store_false'); p.add_argument('--no-waitq', dest='waitq', action='store_false'); p.add_argument('--qpre-flag', default='nt')
    p.add_argument('--cyc', action='store_true'); p.add_argument('--spin', type=int, default=0); p.add_argument('--probe', default=''); p.add_argument('--probe-pass', type=int, default=0)
    p.add_argument('--force-slow', action='store_true'); p.add_argument('--d1', type=int, default=0); p.add_argument('--d2', type=int, default=0)
    for n in ('x2', 'gu', 'q', 'x1', 'q0'): p.add_argument('--sl-' + n, dest='sl_' + n, type=int, default=0)
    return p.parse_args(argv)

if __name__ == '__main__':
    opt = options()
    txt, k = emit(opt)
    open(opt.o, 'w').write(txt)
    print('wrote', opt.o, 'instr', len(k.a.ins), 'nops inserted', k.a.inserted, 'stamps', k.stamp_names)
```

```python
import sys, os, argparse
sys.path.insert(0, os.path.dirname(os.path.abspath(__file__)))
from asmgen import Asm

NAME = 'interleave_layers__sliding_block_cached__glu_gated_swiglu__decode'

OFF_Q = 0x00000; OFF_O = 0x04000; OFF_X1 = 0x08000; OFF_GU = 0x0C000; OFF_X2 = 0x10000; OFF_EPOCH = 0x13000; OFF_ML = 0x14000
OFF_Q0T = 0x1C000; OFF_RS = 0x20000; OFF_C1 = 0x120000; OFF_C2 = 0x160000
OFF_DIAG = 0x200000
V_L = 0; K_L = 32768; W_L = 65536; W2_L = 98304; DUM_L = 114688
RED_A = 115712; RED_B = 116224; RED_C = 116736; MX = 117248; FX = 117376; PX = 117504; LX = 118528; HX = 118784; QX = 119296
LDS_SIZE = 120832
G, J, W, R = 's4', 's5', 's6', 's7'
sX, sK, sV, sWQ, sWO, sW1, sW3, sW2, sOUT, sDBG, sWS, sWF = [f's[{40+4*k}:{43+4*k}]' for k in range(12)]
def srd_lo(k): return 40 + 4 * k
FAST, PASS, CNT = 's16', 's17', 's18'
T0, T1, T2, T3, T4 = 's19', 's20', 's21', 's22', 's23'
MGRP = 's[24:25]'
oQ, oRS, oML, oO, oC1, oX1, oGU, oC2, oX2 = 's26', 's27', 's28', 's29', 's30', 's31', 's32', 's33', 's34'
CEXP = 's35'; XCC = 's39'; FASTA = 's36'; TQ = 's37'; oQ0 = 's38'
MASK4 = 's[8:9]'
TAG32, MASK12 = 's14', 's15'
L = 'v1'
vXF, vGp, vRSp, vRSg, vMLg, vOp, vCp, vCg, vXp, vPub, vRedW, vRedR, vPW, vPR = [f'v{k}' for k in range(2, 16)]
KF = 16; VF = 48; WA = 80; WB = 112; CS = 144
vMW, vMR, vLW, vLR, vGU, vHW, vHR, vMLp, vRES, vRedR4 = [f'v{k}' for k in range(146, 156)]
MLQ = 156
XF = 160; QB = 164; ACC = 180
ONES = 240
vQXW, vLin, vC2p, vC2g, vX8p, vRES8, vTAG, vST, vQXR = 'v244', 'v245', 'v248', 'v249', 'v250', 'v251', 'v252', 'v253', 'v254'
def v(a, n=1): return f'v{a}' if n == 1 else f'v[{a}:{a+n-1}]'
MAXPOLL = 60000
SIZES = {0: 1024, 1: 0x4000000, 2: 0x4000000, 3: 0x400000, 4: 0x400000, 5: 1835008, 6: 1835008, 7: 1835008, 8: 1024, 9: 256, 10: 0x10000000}

class K:
    def __init__(self, opt):
        self.o = opt; self.a = Asm(); self.nlab = 0; self.stamp_names = []
        self.ld = 'nt' if opt.nt else ''
    def __call__(self, t): self.a(t)
    def lab(self, base):
        self.nlab += 1; return f'L_{base}_{self.nlab}'
    def stamp(self, name):
        A = self
        if self.o.probe == name:
            l = self.lab('probe'); A(f's_cmp_lg_u32 {PASS}, {self.o.probe_pass}'); A(f's_cbranch_scc1 {l}')
            A('s_memrealtime s[92:93]'); A('s_waitcnt lgkmcnt(0)'); A(f'{l}:')
        if not self.o.stamps: return
        if self.o.stamp_only and name not in self.o.stamp_only.split(','): return
        if name not in self.stamp_names: self.stamp_names.append(name)
        k = self.stamp_names.index(name)
        A('s_memrealtime s[88:89]'); A('s_waitcnt lgkmcnt(0)')
        A(f's_lshl_b32 s90, {PASS}, 5'); A(f's_add_u32 s90, s90, {k}'); A('s_mov_b32 s91, m0'); A('s_mov_b32 m0, s90')
        A(f'v_writelane_b32 {vST}, s88, m0'); A('s_mov_b32 m0, s91')
    def flush_stamps(self):
        if not self.o.stamps: return
        A = self
        A('s_mov_b64 exec, -1')
        A(f's_lshl_b32 s90, s2, 2'); A(f's_add_u32 s90, s90, {W}'); A('s_lshl_b32 s90, s90, 8'); A(f's_add_u32 s90, s90, {OFF_DIAG}')
        A(f'v_lshlrev_b32 v255, 2, {L}')
        A(f'buffer_store_dword {vST}, v255, {sWS}, s90 offen')
    def end(self):
        if self.o.spin:
            A = self; l = self.lab('spin'); d = self.lab('spind')
            A('s_waitcnt lgkmcnt(0)')
            A('s_mov_b32 s96, 0'); A(f'{l}:'); A(('s_memtime' if self.o.cyc else 's_memrealtime') + ' s[94:95]'); A('s_waitcnt lgkmcnt(0)'); A('s_sub_u32 s94, s94, s92')
            A('s_add_u32 s96, s96, 1'); A('s_cmp_gt_u32 s96, 200000'); A(f's_cbranch_scc1 {d}')
            A(f's_cmp_lt_u32 s94, {self.o.spin}'); A(f's_cbranch_scc1 {l}'); A(f'{d}:')
        self.flush_stamps(); self('s_endpgm')
    def delay(self, n):
        while n > 0:
            self(f's_nop {min(n,16)-1}'); n -= min(n, 16)

    def poll(self, loads, check, name, sleep=0):
        A = self; lp = self.lab('poll_' + name)
        A(f's_mov_b32 {CNT}, 0')
        A(f'{lp}:')
        for t in loads: A(t)
        A(f's_add_u32 {CNT}, {CNT}, 1'); A(f's_cmp_gt_u32 {CNT}, {MAXPOLL}'); A('s_cbranch_scc1 L_bail')
        A('s_waitcnt vmcnt(0)')
        check()
        if sleep:
            lo = self.lab('pok'); A(f's_cbranch_vccz {lo}'); A(f's_sleep {sleep}'); A(f's_branch {lp}'); A(f'{lo}:')
        else:
            A(f's_cbranch_vccnz {lp}')
    def chk_regs(self, regs, tmp):
        A = self; regs = list(regs)
        A(f'v_max3_u32 v{tmp}, v{regs[0]}, v{regs[1]}, v{regs[2]}'); rest = regs[3:]
        while rest:
            if len(rest) >= 2: A(f'v_max3_u32 v{tmp}, v{tmp}, v{rest[0]}, v{rest[1]}'); rest = rest[2:]
            else: A(f'v_max_u32 v{tmp}, v{tmp}, v{rest[0]}'); rest = []
        A(f'v_cmp_eq_u32 vcc, -1, v{tmp}')
    def chk_tag(self, regs, tmp):
        A = self; regs = list(regs)
        A(f'v_bitop3_b32 v{tmp}, v{regs[0]}, v{regs[1]}, {vTAG} bitop3:0x7e')
        if len(regs) == 4:
            A(f'v_bitop3_b32 v{tmp+1}, v{regs[2]}, v{regs[3]}, {vTAG} bitop3:0x7e')
            A(f'v_bitop3_b32 v{tmp}, v{tmp}, v{tmp+1}, {MASK12} bitop3:0xa8')
        else:
            A(f'v_and_b32 v{tmp}, {MASK12}, v{tmp}')
    def put_tag(self, r): self(f'v_bfi_b32 v{r}, {MASK12}, {vTAG}, v{r}')
    def strip_tag(self, r): self(f'v_and_b32 v{r}, 0xfffff000, v{r}')
    def pub(self, texts, flag=FAST):
        A = self; ls = self.lab('slow'); ld = self.lab('pubd')
        if isinstance(texts, str): texts = [texts]
        A(f's_cmp_eq_u32 {flag}, 0'); A(f's_cbranch_scc1 {ls}')
        for t in texts: A(t)
        A(f's_branch {ld}')
        A(f'{ls}:')
        for t in texts: A(t + ' sc1')
        A(f'{ld}:')

    def swap_red(self, op, r, t, which):
        A = self
        A(f'v_mov_b32 v{t}, v{r}'); A(f'v_permlane{which}_swap_b32 v{r}, v{t}'); A(f'{op} v{r}, v{r}, v{t}')
    def dpp(self, op, r, ror):
        self(f'{op}_dpp v{r}, v{r}, v{r} row_ror:{ror} row_mask:0xf bank_mask:0xf')
    def interleave(self, mf, va, per=3):
        va = list(va)
        for m in mf:
            self(m)
            for _ in range(per):
                if va: self(va.pop(0))
        for x in va: self(x)

    def gemv_core(self, WR, red, a=XF, stats=False):
        A = self
        D = lambda T, t: ACC + 16 * T + 4 * t
        mf = [f'v_mfma_f32_16x16x32_bf16 {v(D(T,t),4)}, {v(a,4)}, {v(WR+8*t+4*T,4)}, 0' for t in range(4) for T in range(2)]
        va = []
        S1, S2, TT = 212, 213, 214
        if stats:
            va.append(f'v_dot2_f32_bf16 v{S1}, v{a}, v221, 0'); va.append(f'v_dot2_f32_bf16 v{S2}, v{a}, v{a}, 0')
            for k in range(1, 4):
                va.append(f'v_dot2_f32_bf16 v{S1}, v{a+k}, v221, v{S1}'); va.append(f'v_dot2_f32_bf16 v{S2}, v{a+k}, v{a+k}, v{S2}')
            va += [f'v_permlane32_swap_b32 v{S1}, v{S2}', f'v_add_f32 v{S1}, v{S1}, v{S2}',
                   f'v_mov_b32 v{TT}, v{S1}', f'v_permlane16_swap_b32 v{S1}, v{TT}', f'v_add_f32 v{S1}, v{S1}, v{TT}']
            for ror in (8, 4, 2, 1): va.append(f'v_add_f32_dpp v{S1}, v{S1}, v{S1} row_ror:{ror} row_mask:0xf bank_mask:0xf')
            va += [f'v_mov_b32 v{S2}, v{S1}', f'v_permlane32_swap_b32 v{S1}, v{S2}',
                   f'v_mul_f32 v{S1}, 0x3b000000, v{S1}', f'v_mul_f32 v{S2}, 0x3b000000, v{S2}',
                   f'v_fma_f32 v{S2}, -v{S1}, v{S1}, v{S2}', f'v_max_f32 v{S2}, 0, v{S2}', f'v_add_f32 v{S2}, 0x3727c5ac, v{S2}',
                   f'v_rsq_f32 v{S2}, v{S2}']
            A('v_mov_b32 v221, 0x3f803f80')
        self.interleave(mf, va, per=3)
        P0, P1 = 216, 217
        for T, P in ((0, P0), (1, P1)):
            A(f'v_add_f32 v{P}, v{D(T,0)}, v{D(T,1)+1}'); A(f'v_add_f32 v{P+2}, v{D(T,2)+2}, v{D(T,3)+3}')
        for P in (P0, P1): A(f'v_add_f32 v{P}, v{P}, v{P+2}')
        if red != RED_A: A(f'v_add_u32 v215, {red-RED_A}, {vRedW}')
        A(f's_mov_b64 exec, {MGRP}')
        A(f'ds_write2_b32 {vRedW if red == RED_A else "v215"}, v{P0}, v{P1} offset0:0 offset1:16')
        A('s_mov_b64 exec, -1')
    def colsum(self):
        A = self
        for k in range(4): A(f'v_mov_b32 v{ONES+k}, 0x3f803f80')
        A('s_waitcnt lgkmcnt(0)')
        self.gemv_core(WA, RED_C, a=ONES)

    def ln_finalize_publish(self, soff, flag, tagged_pass0=False):
        A = self
        for w in range(4): A(f'ds_read_b64 {v(224+2*w,2)}, {vRedR} offset:{w*128}')
        lc = self.lab('nocs')
        A(f's_cmp_lg_u32 {PASS}, 0'); A(f's_cbranch_scc1 {lc}')
        for w in range(4): A(f'ds_read_b64 {v(232+2*w,2)}, {vRedR} offset:{RED_C-RED_A+w*128}')
        A('s_waitcnt lgkmcnt(0)')
        for e in range(2):
            A(f'v_add_f32 v{232+e}, v{232+e}, v{234+e}'); A(f'v_add_f32 v{236+e}, v{236+e}, v{238+e}')
            A(f'v_add_f32 v{CS+e}, v{232+e}, v{236+e}')
        A(f'{lc}:')
        A('s_waitcnt lgkmcnt(0)')
        for e in range(2):
            A(f'v_add_f32 v{224+e}, v{224+e}, v{226+e}'); A(f'v_add_f32 v{228+e}, v{228+e}, v{230+e}')
        for e in range(2): A(f'v_add_f32 v{224+e}, v{224+e}, v{228+e}')
        for e in range(2): A(f'v_fma_f32 v{224+e}, -v212, v{CS+e}, v{224+e}')
        for e in range(2): A(f'v_mul_f32 v{224+e}, v213, v{224+e}')
        A('v_cvt_pk_bf16_f32 v224, v224, v225')
        A('s_mov_b64 exec, 0xffff')
        if tagged_pass0:
            l1 = self.lab('q1'); l2 = self.lab('q1d')
            A(f's_cmp_lg_u32 {PASS}, 0'); A(f's_cbranch_scc1 {l1}')
            A(f'v_mov_b32 v228, {TQ}'); A('v_and_b32 v227, 0xffff0000, v224'); A('v_lshl_or_b32 v226, v224, 16, v228'); A('v_or_b32 v227, v227, v228')
            A(f'v_lshlrev_b32 v229, 1, {vPub}')
            A(f'buffer_store_dwordx2 v[226:227], v229, {sWS}, {oQ0} offen sc1')
            A(f's_branch {l2}')
            A(f'{l1}:')
        self.pub(f'buffer_store_dword v224, {vPub}, {sWS}, {soff} offen', flag)
        if tagged_pass0: A(f'{l2}:')
        A('s_mov_b64 exec, -1')

    def tr_weights(self, dst, nt, b0, b1):
        for t in range(nt):
            for T, br in ((0, b0), (1, b1)):
                d = dst + 8 * t + 4 * T
                self(f'ds_read_b64_tr_b16 {v(d,2)}, {br} offset:{t*2048}')
                self(f'ds_read_b64_tr_b16 {v(d+2,2)}, {br} offset:{t*2048+256}')
    def tr_addr(self, d0, d1, base):
        A = self
        A(f'v_lshrrev_b32 v222, 4, {L}'); A('v_lshlrev_b32 v223, 9, v222')
        A('v_and_b32 v222, 1, v222'); A('v_lshl_add_u32 v223, v222, 5, v223')
        A(f'v_and_b32 v222, 12, {L}'); A('v_lshl_add_u32 v223, v222, 4, v223')
        A(f'v_and_b32 v222, 3, {L}'); A('v_lshl_add_u32 v223, v222, 3, v223')
        A(f'v_add_u32 {d0}, {base}, v223'); A(f'v_xor_b32 {d1}, 32, {d0}')
    def load_wave_weights(self, dst):
        A = self
        A(f's_lshl_b32 {T0}, {W}, 13'); A(f's_add_u32 {T0}, {T0}, {W_L}'); self.tr_addr('v236', 'v237', T0)
        self.tr_weights(dst, 4, 'v236', 'v237')
    def slice_src(self, dst, stride):
        A = self
        A(f'v_lshrrev_b32 v222, 5, {L}'); A(f'v_and_b32 v223, 3, {L}'); A('v_lshlrev_b32 v222, 1, v222'); A('v_xor_b32 v222, v222, v223')
        A(f'v_lshrrev_b32 v223, 2, {L}'); A(f'v_mul_u32_u24 v223, {stride}, v223'); A(f'v_lshl_add_u32 {dst}, v222, 4, v223')
    def dma_slices(self, srd, vsrc, soff, n, step, lds_base, oob_from=None):
        A = self
        for k in range(n):
            if k % 4 == 0:
                if k == 0: A(f's_mov_b32 m0, {lds_base}')
                else: A('s_add_u32 m0, m0, 4096')
            if oob_from is not None and k == oob_from[0]: A(f's_add_u32 {soff}, {soff}, {oob_from[1]}')
            A(f'buffer_load_dwordx4 {vsrc}, {srd}, {soff} offen offset:{(k%4)*1024} {self.ld} lds')
            if k + 1 < n:
                d = step - 1024 if (k % 4) != 3 else step + 3072
                A(f's_add_u32 {soff}, {soff}, {d}')

    def kv_base(self):
        A = self
        A(f's_lshl_b32 {T3}, {G}, 23'); A(f's_lshl_b32 {T1}, {W}, 18'); A(f's_add_u32 {T3}, {T3}, {T1}')
        A(f's_lshl_b32 {T1}, {J}, 12'); A(f's_add_u32 {T3}, {T3}, {T1}'); A(f's_add_u32 {T3}, {T3}, {28672*256}')
        A(f's_add_u32 {T4}, {T3}, 131072'); A(f's_lshl_b32 {T2}, {W}, 13')
    def v_issue(self):
        A = self
        self.kv_base()
        A(f'v_lshrrev_b32 v222, 4, {L}'); A(f'v_and_b32 v224, 15, {L}'); A('v_lshlrev_b32 v223, 1, v222'); A('v_lshlrev_b32 v225, 8, v222')
        A('v_xor_b32 v223, v223, v224'); A('v_lshl_add_u32 v226, v223, 4, v225'); A('v_xor_b32 v227, 128, v226')
        for T in range(2):
            A(f's_add_u32 m0, {T2}, {V_L + T*4096}')
            if T == 0: A('s_nop 0')
            for n in range(4): A(f'buffer_load_dwordx4 v{226+(n&1)}, {sV}, {T4 if T else T3} offen offset:{n*1024} {self.ld} lds')
    def k_issue(self, rebase):
        A = self
        if rebase: self.kv_base()
        A(f'v_lshrrev_b32 v222, 4, {L}'); A(f'v_and_b32 v224, 15, {L}'); A('v_lshlrev_b32 v225, 8, v222'); A('v_xor_b32 v223, v222, v224')
        A('v_lshl_add_u32 v228, v223, 4, v225')
        for n in range(1, 4): A(f'v_xor_b32 v{228+n}, {64*n}, v228')
        for T in range(2):
            A(f's_add_u32 m0, {T2}, {K_L + T*4096}')
            for n in range(4): A(f'buffer_load_dwordx4 v{228+n}, {sK}, {T4 if T else T3} offen offset:{n*1024} {self.ld} lds')
    def v_frags(self):
        A = self
        A(f'v_lshrrev_b32 v222, 4, {L}'); A(f'v_bfe_u32 v223, {L}, 2, 2'); A('v_lshl_add_u32 v222, v222, 2, v223')
        A('v_and_b32 v223, 7, v222'); A(f's_lshl_b32 {T0}, {W}, 1'); A(f'v_xor_b32 v223, {T0}, v223'); A('v_lshlrev_b32 v223, 5, v223')
        A('v_lshl_add_u32 v222, v222, 8, v223'); A(f'v_and_b32 v223, 3, {L}'); A('v_lshl_add_u32 v222, v223, 3, v222'); A('v_xor_b32 v223, 32, v222')
        for U in range(2):
            for w in range(4):
                d = VF + 16 * U + 4 * w
                A(f'ds_read_b64_tr_b16 {v(d,2)}, v{222+U} offset:{V_L + w*8192}')
                A(f'ds_read_b64_tr_b16 {v(d+2,2)}, v{222+U} offset:{V_L + w*8192 + 4096}')
    def k_frags_regs(self, b):
        A = self
        A(f'v_and_b32 v{b}, 15, {L}'); A(f'v_lshrrev_b32 v{b+1}, 4, {L}'); A(f'v_xor_b32 v{b+1}, v{b+1}, v{b}'); A(f'v_lshlrev_b32 v{b+1}, 4, v{b+1}')
        A(f'v_lshl_add_u32 v{b}, v{b}, 8, v{b+1}'); A(f's_lshl_b32 {T0}, {W}, 13'); A(f'v_add_u32 v{b}, {T0}, v{b}')
        for t in range(1, 4): A(f'v_xor_b32 v{b+t}, {64*t}, v{b}')
        for T in range(2):
            for t in range(4): A(f'ds_read_b128 {v(KF+16*T+4*t,4)}, v{b+t} offset:{K_L + T*4096}')
    def q_load(self): return f'buffer_load_dwordx4 {v(XF,4)}, {vLin}, {sWS}, {oQ} offen sc1'
    def q_share(self):
        self(f'ds_write_b128 {vQXW}, {v(XF,4)}')
    def q_read(self):
        for t in range(4): self(f'ds_read_b128 {v(QB+4*t,4)}, {vQXR} offset:{64*t}')

    def first_q(self, extra=0, after_k=None):
        A = self
        A(f's_waitcnt vmcnt({8+extra})'); A('s_barrier')
        self.stamp('V_landed')
        A(f'v_lshlrev_b32 v238, 5, {L}')
        ld = [f'buffer_load_dwordx4 v[224:227], v238, {sWS}, {oQ0} offen sc1', f'buffer_load_dwordx4 v[228:231], v238, {sWS}, {oQ0} offen offset:16 sc1']
        l0 = self.lab('fq_n0'); A(f's_cmp_lg_u32 {W}, 0'); A(f's_cbranch_scc1 {l0}')
        for t in ld: A(t)
        A(f'{l0}:')
        self.v_frags()
        lb = self.lab('fq_b1'); l1 = self.lab('fq_k'); l2 = self.lab('fq_k2')
        A(f's_cmp_lg_u32 {W}, 0'); A(f's_cbranch_scc1 {l1}')
        A(f's_waitcnt vmcnt({2+extra})'); A(f's_branch {l2}')
        A(f'{l1}:'); A(f's_waitcnt vmcnt({extra})')
        A(f'{l2}:')
        self.stamp('K_landed')
        self.k_frags_regs(232)
        if after_k: after_k()
        A(f's_cmp_lg_u32 {W}, 0'); A(f's_cbranch_scc1 {lb}')
        lp = self.lab('q0'); lo = self.lab('q0ok')
        A(f's_mov_b32 {CNT}, 0')
        A(f's_waitcnt vmcnt({10 if after_k else 0})')
        A(f'{lp}:')
        A(f'v_mov_b32 v221, {TQ}')
        for k in range(4): A(f'v_bitop3_b32 v{216+k}, v{224+2*k}, v{225+2*k}, v221 bitop3:0x7e')
        A('v_or3_b32 v216, v216, v217, v218'); A('v_or_b32 v216, v216, v219')
        A('v_and_b32 v217, 0xfff0, v216'); A('v_cmp_ne_u32 vcc, 0, v217')
        A(f's_cbranch_vccz {lo}')
        if self.o.sl_q0: A(f's_sleep {self.o.sl_q0}')
        for t in ld: A(t)
        A(f's_add_u32 {CNT}, {CNT}, 1'); A(f's_cmp_gt_u32 {CNT}, {MAXPOLL}'); A('s_cbranch_scc1 L_bail')
        A('s_waitcnt vmcnt(0)')
        A(f's_branch {lp}')
        A(f'{lo}:')
        A('v_and_b32 v217, 15, v216'); A('v_cmp_ne_u32 vcc, 0, v217'); A('s_cmp_eq_u64 vcc, 0'); A(f's_cselect_b32 {T1}, 1, 0')
        if self.o.force_slow: A(f's_mov_b32 {T1}, 0')
        A(f's_mov_b32 {T0}, 0x07060302')
        for k in range(4): A(f'v_perm_b32 v{XF+k}, v{225+2*k}, v{224+2*k}, {T0}')
        A(f'v_mov_b32 v216, {T1}'); A(f'v_mov_b32 v217, {FX}'); A('ds_write_b32 v217, v216')
        self.q_share()
        A(f'{lb}:')
        A('s_waitcnt lgkmcnt(0)'); A('s_barrier')
        A(f'v_mov_b32 v217, {FX}'); A('ds_read_b32 v216, v217')
        self.q_read()
        A('s_waitcnt lgkmcnt(0)')
        A(f'v_readfirstlane_b32 {FAST}, v216')
    def next_q(self, sleep=0):
        A = self
        lb = self.lab('nq_b1'); A(f's_cmp_lg_u32 {W}, 0'); A(f's_cbranch_scc1 {lb}')
        self.poll([self.q_load()], lambda: self.chk_regs(range(XF, XF + 4), 220), 'q', sleep)
        self.q_share()
        A(f'{lb}:')
        A('s_waitcnt lgkmcnt(0)'); A('s_barrier')
        self.q_read()
        A('s_waitcnt lgkmcnt(0)')

    def s2(self):
        A = self
        ST0, ST1, M, TT = 180, 184, 188, 189
        for t in range(4):
            for T, ST in ((0, ST0), (1, ST1)):
                A(f'v_mfma_f32_16x16x32_bf16 {v(ST,4)}, {v(KF+16*T+4*t,4)}, {v(QB+4*t,4)}, {v(ST,4) if t else 0}')
        A(f'v_max3_f32 v{M}, v{ST0}, v{ST0+1}, v{ST0+2}'); A(f'v_max3_f32 v{TT}, v{ST0+3}, v{ST1}, v{ST1+1}')
        A(f'v_max3_f32 v{M}, v{M}, v{ST1+2}, v{ST1+3}'); A(f'v_max_f32 v{M}, v{M}, v{TT}')
        self.swap_red('v_max_f32', M, TT, 16); self.swap_red('v_max_f32', M, TT, 32)
        A('s_mov_b64 exec, 15'); A(f'ds_write_b32 {vMW}, v{M}'); A('s_mov_b64 exec, -1')
        A('s_waitcnt lgkmcnt(0)'); A('s_barrier')
        A(f'ds_read_b128 {v(192,4)}, {vMR}'); A('s_waitcnt lgkmcnt(0)')
        A(f'v_max3_f32 v{M}, v192, v193, v194'); A(f'v_max_f32 v{M}, v{M}, v195'); A(f'v_mul_f32 v{M}, {CEXP}, v{M}')
        for k in range(8): A(f'v_fma_f32 v{ST0+k}, v{ST0+k}, {CEXP}, -v{M}')
        for k in range(8): A(f'v_exp_f32 v{ST0+k}, v{ST0+k}')
        for k in range(4): A(f'v_cvt_pk_bf16_f32 v{192+k}, v{ST0+2*k}, v{ST0+2*k+1}')
        A(f's_mov_b64 exec, {MASK4}'); A(f'ds_write_b128 {vPW}, {v(192,4)}'); A('s_mov_b64 exec, -1')
        A(f'v_add_f32 v{TT}, v{ST0}, v{ST0+1}'); A(f'v_add_f32 v196, v{ST0+2}, v{ST0+3}'); A(f'v_add_f32 v197, v{ST0+4}, v{ST0+5}'); A(f'v_add_f32 v198, v{ST0+6}, v{ST0+7}')
        A(f'v_add_f32 v{TT}, v{TT}, v196'); A('v_add_f32 v197, v197, v198'); A(f'v_add_f32 v{TT}, v{TT}, v197')
        A(f's_mov_b64 exec, {MASK4}'); A(f'ds_write_b32 {vLW}, v{TT}'); A('s_mov_b64 exec, -1')
        A('s_waitcnt lgkmcnt(0)'); A('s_barrier')
        PB = 192
        for w in range(4): A(f'ds_read_b128 {v(PB+4*w,4)}, {vPR} offset:{w*256}')
        A(f'ds_read_b32 v190, {vLR}')
        A('s_waitcnt lgkmcnt(0)')
        OT0, OT1 = 208, 212
        mf = [f'v_mfma_f32_16x16x32_bf16 {v(OT,4)}, {v(VF+16*U+4*w,4)}, {v(PB+4*w,4)}, {v(OT,4) if w else 0}' for w in range(4) for U, OT in ((0, OT0), (1, OT1))]
        va = ['v_add_f32_dpp v190, v190, v190 row_ror:4 row_mask:0xf bank_mask:0xf', f'v_mov_b32 v{MLQ}, v{M}',
              'v_add_f32_dpp v190, v190, v190 row_ror:8 row_mask:0xf bank_mask:0xf',
              'v_mov_b32 v191, v190', 'v_permlane16_swap_b32 v190, v191', 'v_add_f32 v190, v190, v191',
              'v_mov_b32 v191, v190', 'v_permlane32_swap_b32 v190, v191', f'v_add_f32 v{MLQ+1}, v190, v191']
        self.interleave(mf, va, per=2)
        lm = self.lab('noml')
        A(f's_cmp_lg_u32 {W}, 3'); A(f's_cbranch_scc1 {lm}')
        A('s_mov_b64 exec, 15'); self.pub(f'buffer_store_dwordx4 {v(MLQ,4)}, {vMLp}, {sWS}, {oML} offen'); A('s_mov_b64 exec, -1')
        A(f'{lm}:')
        for k in range(8): self.put_tag(OT0 + k)
        A(f's_mov_b64 exec, {MASK4}')
        self.pub([f'buffer_store_dwordx4 {v(OT0,4)}, {vRSp}, {sWS}, {oRS} offen', f'buffer_store_dwordx4 {v(OT1,4)}, {vRSp}, {sWS}, {oRS} offen offset:16'])
        A('s_mov_b64 exec, -1')

    def common_addr(self):
        A = self
        A(f'v_and_b32 v222, 15, {L}'); A(f'v_lshrrev_b32 v223, 4, {L}')
        A('v_lshlrev_b32 v224, 4, v223'); A('v_and_b32 v225, 3, v222')
        A(f'v_lshl_add_u32 {vXF}, v222, 6, v224')
        A('v_mul_u32_u24 v226, 320, v225'); A('v_add_u32 v226, v226, v224'); A(f'v_add_u32 {vQXR}, {QX}, v226')
        A('v_mul_u32_u24 v226, 320, v223'); A('v_lshl_add_u32 v226, v222, 4, v226'); A(f'v_add_u32 {vQXW}, {QX}, v226')
        A(f's_lshl_b32 {T0}, {W}, 12'); A(f's_lshl_b32 {T1}, {J}, 5'); A(f's_add_u32 {T0}, {T0}, {T1}')
        A('v_lshlrev_b32 v226, 14, v222'); A('v_lshl_add_u32 v226, v223, 10, v226'); A(f'v_add_u32 {vRSp}, {T0}, v226')
        A(f's_lshl_b32 {T1}, {J}, 4'); A('v_lshlrev_b32 v226, 9, v225'); A(f'v_add_u32 {vMLp}, {T1}, v226')
        A(f's_lshl_b32 {T0}, {W}, 2'); A(f's_add_u32 {T0}, {T0}, {MX}'); A('v_lshlrev_b32 v226, 4, v225'); A(f'v_add_u32 {vMW}, {T0}, v226')
        A(f'v_add_u32 {vMR}, {MX}, v226')
        A('v_lshlrev_b32 v227, 6, v225'); A('v_add_u32 v226, v227, v224')
        A(f'v_add_u32 {vPR}, {PX}, v226'); A(f's_lshl_b32 {T0}, {W}, 8'); A(f'v_add_u32 {vPW}, {T0}, {vPR}')
        A(f's_lshl_b32 {T0}, {W}, 4'); A(f's_add_u32 {T1}, {T0}, {LX}'); A('v_lshl_add_u32 v228, v223, 2, v227'); A(f'v_add_u32 {vLW}, {T1}, v228')
        A(f'v_and_b32 v228, 60, {L}'); A('v_add_u32 v228, v228, v227'); A(f'v_add_u32 {vLR}, {LX}, v228')
        A(f's_lshl_b64 {MGRP}, 0xffff, {T0}')
        A(f's_lshl_b32 {T0}, {W}, 7'); A(f's_add_u32 {T0}, {T0}, {RED_A}'); A('v_lshlrev_b32 v226, 2, v222'); A(f'v_add_u32 {vRedW}, {T0}, v226')
        A('v_lshlrev_b32 v226, 3, v222'); A(f'v_add_u32 {vRedR}, {RED_A}, v226')
        A('s_mov_b32 s8, 0x000f000f'); A('s_mov_b32 s9, 0x000f000f')
        A(f's_mov_b32 {CEXP}, 0x3e0293ee')
        A(f's_lshl_b32 {T0}, {G}, 10')
        for r, off in ((oQ, OFF_Q), (oO, OFF_O), (oX1, OFF_X1), (oGU, OFF_GU), (oX2, OFF_X2)): A(f's_add_u32 {r}, {T0}, {off}')
        A(f's_lshl_b32 {T0}, {G}, 11'); A(f's_add_u32 {oML}, {T0}, {OFF_ML}')
        A(f's_lshl_b32 {T0}, {G}, 16'); A(f's_add_u32 {oRS}, {T0}, {OFF_RS}')
        A(f's_mov_b32 {oC1}, {OFF_C1}'); A(f's_mov_b32 {oC2}, {OFF_C2}')
        for k in (4, 5, 6, 7, 8):
            A(f's_mov_b32 s{srd_lo(k)+2}, {SIZES[k]}'); A(f's_mov_b32 s{srd_lo(k)+3}, 0x20000')
        A(f's_mov_b32 {MASK12}, 0xfff')
        A('s_waitcnt lgkmcnt(0)')
        A(f's_add_u32 {TAG32}, {TAG32}, 1'); A(f's_and_b32 {T0}, {TAG32}, 0xfff'); A(f'v_mov_b32 {vTAG}, {T0}')
        A(f's_lshl_b32 {TQ}, {T0}, 4'); A(f's_or_b32 {TQ}, {TQ}, {XCC}')
        A(f's_and_b32 {T0}, {TAG32}, 0xfffffff0'); A(f's_or_b32 {T0}, {T0}, {XCC}')
        A(f'v_mov_b32 v{MLQ+2}, {TAG32}'); A(f'v_mov_b32 v{MLQ+3}, {T0}')
        A(f's_lshl_b32 {T0}, {G}, 11'); A(f's_add_u32 {oQ0}, {T0}, {OFF_Q0T}')

    def next_pass(self):
        A = self
        for r in (oQ, oO, oX1, oGU): A(f's_add_u32 {r}, {r}, 8192')
        A(f's_add_u32 {oML}, {oML}, 16384')
        A(f's_add_u32 {oRS}, {oRS}, 524288'); A(f's_add_u32 {oC1}, {oC1}, 131072'); A(f's_add_u32 {oC2}, {oC2}, 262144')
        A(f's_mov_b32 {PASS}, 1')

    def small_clear(self):
        A = self; l = self.lab('noclr')
        A(f's_cmp_lg_u32 {W}, 3'); A(f's_cbranch_scc1 {l}')
        for k in range(4): A(f'v_mov_b32 v{232+k}, -1')
        A(f'v_lshrrev_b32 v236, 2, {L}'); A(f'v_and_b32 v237, 3, {L}'); A('v_lshlrev_b32 v236, 13, v236'); A('v_lshl_add_u32 v236, v237, 4, v236')
        A(f's_lshl_b32 {T0}, {G}, 10'); A(f's_lshl_b32 {T1}, {R}, 6'); A(f's_add_u32 {T0}, {T0}, {T1}')
        A('s_mov_b32 exec_lo, -1'); A('s_mov_b32 exec_hi, 15')
        A(f'buffer_store_dwordx4 {v(232,4)}, v236, {sWS}, {T0} offen sc1')
        A('s_mov_b64 exec, -1')
        A(f'{l}:')
    def qpre(self):
        A = self
        A(f's_lshl_b32 {T0}, {J}, 17'); A(f's_lshl_b32 {T1}, {W}, 15'); A(f's_add_u32 {T0}, {T0}, {T1}'); A(f's_lshl_b32 {T1}, {G}, 10'); A(f's_add_u32 {T0}, {T0}, {T1}')
        A(f's_mov_b32 m0, {DUM_L}')
        for k in range(4):
            A(f'buffer_load_dwordx4 {vLin}, {sWQ}, {T0} offen {self.o.qpre_flag} lds')
            if k < 3: A(f's_add_u32 {T0}, {T0}, 8192')
    def code_prefetch(self, lo, hi, n):
        if not self.o.codepf: return
        A = self; l = self.lab('nopf'); pc = self.lab('pc')
        A(f's_cmp_lg_u32 {W}, 2'); A(f's_cbranch_scc1 {l}')
        A('s_getpc_b64 s[10:11]'); A(f'{pc}:')
        A(f's_sub_u32 s10, s10, {pc}-{lo}'); A('s_subb_u32 s11, s11, 0')
        A(f'v_lshlrev_b32 v238, 6, {L}')
        for k in range(n):
            A(f'v_min_u32 v239, {hi}-{lo}-4, v238'); A('global_load_dword v255, v239, s[10:11]')
            if k + 1 < n: A('v_add_u32 v238, 4096, v238')
        A(f'{l}:')
    def wo_prefetch(self):
        A = self
        A(f's_add_u32 {T1}, {G}, 1'); A(f's_lshl_b32 {T1}, {T1}, 19')
        A('s_mov_b32 s84, s56'); A('s_mov_b32 s85, s57'); A(f's_mov_b32 s86, {T1}'); A('s_mov_b32 s87, 0x20000')
        A(f's_lshl_b32 {T1}, {R}, 2'); A(f's_add_u32 {T1}, {T1}, {W}'); A(f's_mul_i32 {T1}, {T1}, 10240'); A(f's_lshl_b32 {T0}, {G}, 19'); A(f's_add_u32 {T0}, {T0}, {T1}')
        A(f's_mov_b32 m0, {DUM_L}')
        for k in range(10):
            A(f'buffer_load_dwordx4 {vLin}, {sWF}, {T0} offen {self.o.pre_flag} lds')
            if k < 9: A(f's_add_u32 {T0}, {T0}, 1024')
    def pretouch_early(self):
        A = self
        A(f's_lshl_b32 {T0}, {R}, 2'); A(f's_add_u32 {T0}, {T0}, {W}')
        A(f's_lshl_b32 {T1}, {T0}, 10'); A(f's_lshl_b32 {T2}, {G}, 16'); A(f's_add_u32 {T1}, {T1}, {T2}'); A(f's_add_u32 {T1}, {T1}, {OFF_RS}')
        A(f's_mov_b32 m0, {DUM_L}')
        A(f'buffer_load_dwordx4 {vLin}, {sWS}, {T1} offen lds')
        A(f's_lshr_b32 {T2}, {T0}, 1'); A(f's_lshl_b32 {T2}, {T2}, 14'); A(f's_and_b32 {T3}, {T0}, 1'); A(f's_lshl_b32 {T3}, {T3}, 10'); A(f's_add_u32 {T2}, {T2}, {T3}')
        A(f's_lshl_b32 {T3}, {G}, 11'); A(f's_add_u32 {T2}, {T2}, {T3}'); A(f's_add_u32 {T2}, {T2}, {OFF_ML}')
        A(f's_cmp_lt_u32 {T0}, 4'); A(f's_cselect_b32 {T2}, {T2}, 0x10000000')
        A(f'buffer_load_dwordx4 {vLin}, {sWS}, {T2} offen lds')
        A(f's_add_u32 {T1}, {T1}, 524288')
        A(f'buffer_load_dwordx4 {vLin}, {sWS}, {T1} offen lds')
    def pretouch_late(self):
        A = self
        A(f's_lshl_b32 {T0}, {R}, 2'); A(f's_add_u32 {T0}, {T0}, {W}')
        A(f's_lshl_b32 {T1}, {T0}, 13'); A(f's_lshl_b32 {T2}, {G}, 10'); A(f's_add_u32 {T1}, {T1}, {T2}')
        A(f's_cmp_lt_u32 {T0}, 9'); A(f's_cselect_b32 {T1}, {T1}, 0x10000000')
        A(f's_mov_b32 m0, {DUM_L}')
        A(f'buffer_load_dwordx4 {vLin}, {sWS}, {T1} offen lds')
        if self.o.pre_cross:
            A(f's_lshr_b32 {T1}, {T0}, 4'); A(f's_lshl_b32 {T1}, {T1}, 17'); A(f's_and_b32 {T2}, {T0}, 15'); A(f's_lshl_b32 {T2}, {T2}, 10'); A(f's_add_u32 {T1}, {T1}, {T2}')
            A(f's_lshl_b32 {T2}, {G}, 14'); A(f's_add_u32 {T1}, {T1}, {T2}'); A(f's_add_u32 {T1}, {T1}, {OFF_C1}')
            A(f's_sub_u32 {T2}, {T0}, 32'); A(f's_lshl_b32 {T2}, {T2}, 10'); A(f's_lshl_b32 {T3}, {G}, 15'); A(f's_add_u32 {T2}, {T2}, {T3}'); A(f's_add_u32 {T2}, {T2}, {OFF_C2}')
            A(f's_cmp_lt_u32 {T0}, 32'); A(f's_cselect_b32 {T1}, {T1}, {T2}')
            A(f'buffer_load_dwordx4 {vLin}, {sWS}, {T1} offen lds')
            A(f's_and_b32 {T2}, {T0}, 31'); A(f's_lshl_b32 {T2}, {T2}, 10'); A(f's_add_u32 {T2}, {T2}, {OFF_C2 + 262144}')
            A(f's_cmp_eq_u32 {G}, 0'); A(f's_cselect_b32 {T2}, {T2}, 0x10000000'); A(f's_cmp_lt_u32 {T0}, 32'); A(f's_cselect_b32 {T2}, {T2}, 0x10000000')
            A(f'buffer_load_dwordx4 {vLin}, {sWS}, {T2} offen lds')
    def w2_issue(self):
        A = self
        self.slice_src('v235', 1024)
        A(f's_mul_i32 {T0}, {G}, {224*1024}'); A(f's_lshl_b32 {T1}, {W}, 16'); A(f's_add_u32 {T0}, {T0}, {T1}'); A(f's_lshl_b32 {T1}, {R}, 6'); A(f's_add_u32 {T0}, {T0}, {T1}')
        A(f's_lshl_b32 {T1}, {W}, 12'); A(f's_add_u32 {T1}, {T1}, {W2_L}')
        A(f's_cmp_eq_u32 {W}, 3'); A(f's_cselect_b32 {T2}, 0x10000000, 0')
        self.dma_slices(sW2, 'v235', T0, 4, 16 * 1024, T1, oob_from=(2, T2))

    def build(self):
        A = self
        A('s_cmp_ge_u32 s2, 256'); A('s_cbranch_scc1 L_exit')
        if self.o.stamps or self.o.spin: A(('s_memtime' if self.o.cyc else 's_memrealtime') + ' s[92:93]')
        for k, off in ((3, 24), (2, 16), (1, 8), (10, 88), (0, 0)): A(f's_load_dwordx2 s[{srd_lo(k)}:{srd_lo(k)+1}], s[0:1], {off}')
        A(f'v_and_b32 {L}, 63, v0'); A('v_lshrrev_b32 v222, 6, v0'); A(f's_and_b32 {G}, s2, 7'); A(f'v_readfirstlane_b32 {W}, v222')
        A(f's_lshr_b32 {J}, s2, 3'); A(f's_and_b32 {R}, {J}, 15'); A(f'v_lshlrev_b32 {vLin}, 4, {L}')
        for k in (3, 2, 1, 10, 0):
            A(f's_mov_b32 s{srd_lo(k)+2}, {SIZES[k]}'); A(f's_mov_b32 s{srd_lo(k)+3}, 0x20000')
        A(f's_getreg_b32 {XCC}, hwreg(HW_REG_XCC_ID, 0, 4)')
        A(f's_mov_b32 {FAST}, 0'); A(f's_mov_b32 {FASTA}, 0'); A(f's_mov_b32 {PASS}, 0')
        if self.o.stamps: A(f'v_mov_b32 {vST}, 0')
        A('s_waitcnt lgkmcnt(0)')
        if self.o.stamps:
            A('s_mov_b32 m0, 63'); A(f'v_writelane_b32 {vST}, s92, m0')
        A(f's_load_dword {TAG32}, s[80:81], {OFF_EPOCH}')
        for k, off in ((4, 32), (5, 48), (6, 56), (7, 64), (8, 72)): A(f's_load_dwordx2 s[{srd_lo(k)}:{srd_lo(k)+1}], s[0:1], {off}')
        A(f's_cmp_ge_u32 {J}, 16'); A('s_cbranch_scc1 L_F')
        self.build_w()
        self.build_f()
        A('L_bail:')
        self.end()
        A('L_exit:'); A('s_endpgm')

    def build_w(self):
        A = self; o = self.o
        A('L_W:')
        self.qpre()
        self.small_clear()
        self.code_prefetch('L_W', 'L_F', 2)
        A(f'v_and_b32 v222, 15, {L}'); A(f'v_lshrrev_b32 v223, 4, {L}'); A('v_lshlrev_b32 v223, 4, v223'); A(f'v_lshl_add_u32 {vXF}, v222, 6, v223')
        A(f'v_and_b32 v222, 7, {L}'); A(f'v_lshrrev_b32 v223, 5, {L}'); A('v_lshlrev_b32 v223, 2, v223'); A('v_lshl_add_u32 v222, v222, 3, v223')
        A(f's_lshl_b32 {T0}, {R}, 6'); A(f'v_add_u32 {vXp}, {T0}, v222')
        A(f'buffer_load_dwordx4 {v(XF,4)}, {vXF}, {sX}, 0 offen'); A(f'buffer_load_dword {vRES}, {vXp}, {sX}, 0 offen')
        self.slice_src('v235', 8192)
        A(f's_lshl_b32 {T0}, {W}, 20'); A(f's_lshl_b32 {T1}, {G}, 10'); A(f's_add_u32 {T0}, {T0}, {T1}'); A(f's_lshl_b32 {T1}, {R}, 6'); A(f's_add_u32 {T0}, {T0}, {T1}')
        A(f's_lshl_b32 {T1}, {W}, 13'); A(f's_add_u32 {T1}, {T1}, {W_L}')
        if o.waitq: A('s_waitcnt vmcnt(2)')
        self.stamp('qpre_landed')
        self.dma_slices(sWQ, 'v235', T0, 8, 16 * 8192, T1)
        self.v_issue()
        if o.kearly: self.k_issue(False)
        self.stamp('issued')
        self.common_addr()
        A(f'v_and_b32 v222, 31, {L}'); A(f'v_lshrrev_b32 v223, 5, {L}')
        A(f's_lshl_b32 {T0}, {R}, 12'); A(f's_lshl_b32 {T1}, {W}, 10'); A(f's_add_u32 {T0}, {T0}, {T1}')
        A('v_lshlrev_b32 v224, 5, v222'); A('v_lshl_add_u32 v224, v223, 4, v224'); A(f'v_add_u32 {vRSg}, {T0}, v224')
        A(f's_lshr_b32 {T0}, {R}, 2'); A(f's_lshl_b32 {T0}, {T0}, 9'); A('v_lshlrev_b32 v224, 4, v222'); A(f'v_add_u32 {vMLg}, {T0}, v224')
        A(f's_lshl_b32 {T0}, {R}, 6'); A(f's_lshl_b32 {T1}, {W}, 3'); A(f's_add_u32 {T0}, {T0}, {T1}')
        A('v_lshlrev_b32 v224, 5, v223'); A(f'v_bfe_u32 v225, {L}, 4, 1'); A('v_lshl_add_u32 v224, v225, 2, v224'); A(f'v_add_u32 {vOp}, {T0}, v224')
        A(f'v_lshrrev_b32 v223, 3, {L}'); A(f'v_and_b32 v224, 7, {L}'); A('v_lshlrev_b32 v225, 4, v224')
        A(f's_lshl_b32 {T0}, {R}, 10'); A(f's_lshl_b32 {T1}, {G}, 7'); A(f's_add_u32 {T1}, {T1}, {T0}')
        A('v_lshl_add_u32 v226, v223, 14, v225'); A(f'v_add_u32 {vCp}, {T1}, v226')
        A(f's_lshl_b32 {T1}, {G}, 14'); A(f's_add_u32 {T1}, {T1}, {T0}'); A('v_lshl_add_u32 v226, v223, 7, v225'); A(f'v_add_u32 {vCg}, {T1}, v226')
        A(f'v_add_u32 {vRedR4}, {RED_B}, v225')
        A(f's_lshl_b32 {T0}, {R}, 11'); A(f's_and_b32 {T2}, {W}, 1'); A(f's_lshl_b32 {T1}, {T2}, 10'); A(f's_add_u32 {T0}, {T0}, {T1}')
        A(f's_lshl_b32 {T1}, {G}, 15'); A(f's_add_u32 {T1}, {T1}, {T0}')
        A('v_lshlrev_b32 v226, 7, v223'); A('v_lshl_add_u32 v226, v224, 3, v226'); A(f'v_add_u32 {vC2g}, {T1}, v226')
        A(f's_lshl_b32 {T1}, {R}, 6'); A(f's_lshl_b32 {T2}, {T2}, 5'); A(f's_add_u32 {T1}, {T1}, {T2}'); A('v_lshlrev_b32 v226, 2, v224'); A(f'v_add_u32 {vX8p}, {T1}, v226')
        A(f'v_and_b32 v222, 15, {L}'); A(f'v_lshrrev_b32 v223, 4, {L}'); A('v_lshlrev_b32 v224, 2, v222')
        A(f's_lshl_b32 {T1}, {G}, 7'); A(f's_add_u32 {T1}, {T1}, {T0}'); A('v_lshl_add_u32 v225, v223, 15, v224'); A(f'v_add_u32 {vC2p}, {T1}, v225')
        A(f's_lshl_b32 {T0}, {R}, 6'); A(f'v_add_u32 {vPub}, {T0}, v224')
        A(f'v_min_u32 {vGU}, 223, v0'); A(f'v_lshlrev_b32 {vGU}, 1, {vGU}')
        A(f'v_lshlrev_b32 {vHW}, 1, v0'); A(f'v_add_u32 {vHW}, {HX}, {vHW}')
        A('v_and_b32 v224, 3, v222'); A('v_lshlrev_b32 v224, 6, v224'); A('v_lshl_add_u32 v224, v223, 4, v224'); A(f'v_add_u32 {vHR}, {HX}, v224')
        A(f's_waitcnt vmcnt({16 if o.kearly else 8})')
        self.stamp('wq_landed')
        self.load_wave_weights(WA)
        self.colsum()
        A('s_branch L_W_S1')
        A('L_W_NEXT:')
        self.poll([f'buffer_load_dwordx4 {v(XF,4)}, {vXF}, {sWS}, {oX2} offen sc1', f'buffer_load_dword {vRES}, {vXp}, {sWS}, {oX2} offen sc1'],
                  lambda: (A(f'v_max3_u32 v220, v{XF}, v{XF+1}, {vRES}'), A(f'v_max3_u32 v220, v220, v{XF+2}, v{XF+3}'), A('v_cmp_eq_u32 vcc, -1, v220')), 'x2', o.sl_x2)
        self.stamp('x_ok')
        A('L_W_S1:')
        self.gemv_core(WA, RED_A, stats=True)
        A('s_waitcnt lgkmcnt(0)'); A('s_barrier')
        l = self.lab('s1w'); A(f's_cmp_lg_u32 {W}, 0'); A(f's_cbranch_scc1 {l}')
        self.ln_finalize_publish(oQ, FASTA, True)
        A(f'{l}:')
        self.stamp('q_pub')
        l1 = self.lab('p1q'); l2 = self.lab('s2')
        A(f's_cmp_lg_u32 {PASS}, 0'); A(f's_cbranch_scc1 {l1}')
        if not o.kearly:
            A('s_barrier')
            self.k_issue(True)
        self.first_q()
        A(f's_branch {l2}')
        A(f'{l1}:')
        self.next_q()
        A(f'{l2}:')
        self.stamp('q_ok')
        self.s2()
        self.stamp('rs_pub')
        def chk_rs():
            self.chk_tag([164, 165, 166, 167], 220)
            A(f'v_xor_b32 v221, {TAG32}, v170'); A(f'v_bitop3_b32 v222, v171, {TAG32}, -16 bitop3:0x28'); A('v_or3_b32 v220, v220, v221, v222'); A('v_cmp_ne_u32 vcc, 0, v220')
        self.poll([f'buffer_load_dwordx4 v[164:167], {vRSg}, {sWS}, {oRS} offen sc1', f'buffer_load_dwordx4 v[168:171], {vMLg}, {sWS}, {oML} offen sc1'], chk_rs, 'rs')
        self.stamp('rs_ok')
        l = self.lab('wo0'); A(f's_cmp_lg_u32 {PASS}, 0'); A(f's_cbranch_scc1 {l}')
        A('v_and_b32 v220, 15, v171'); A(f'v_cmp_ne_u32 vcc, {XCC}, v220'); A('s_cmp_eq_u64 vcc, 0'); A(f's_cselect_b32 {FASTA}, 1, 0')
        if self.o.force_slow: A(f's_mov_b32 {FASTA}, 0')
        self.slice_src('v235', 1024)
        A(f's_lshl_b32 {T0}, {G}, 19'); A(f's_lshl_b32 {T1}, {W}, 17'); A(f's_add_u32 {T0}, {T0}, {T1}'); A(f's_lshl_b32 {T1}, {R}, 6'); A(f's_add_u32 {T0}, {T0}, {T1}')
        A(f's_lshl_b32 {T1}, {W}, 13'); A(f's_add_u32 {T1}, {T1}, {W_L}')
        self.dma_slices(sWO, 'v235', T0, 8, 16 * 1024, T1)
        A(f'{l}:')
        M, TT, Wt, Lr = 172, 173, 174, 175
        A(f'v_max_f32_dpp v{M}, v168, v168 row_ror:1 row_mask:0xf bank_mask:0xf')
        self.strip_tag(164); self.strip_tag(165)
        self.dpp('v_max_f32', M, 2)
        self.strip_tag(166); self.strip_tag(167)
        self.dpp('v_max_f32', M, 4); self.dpp('v_max_f32', M, 8)
        self.swap_red('v_max_f32', M, TT, 16)
        A(f'v_sub_f32 v{Wt}, v168, v{M}'); A(f'v_exp_f32 v{Wt}, v{Wt}')
        for k in range(4): A(f'v_mul_f32 v{164+k}, v{Wt}, v{164+k}')
        A(f'v_mul_f32 v{Lr}, v{Wt}, v169')
        A('v_permlane16_swap_b32 v164, v166'); A('v_permlane16_swap_b32 v165, v167')
        A(f'v_mov_b32 v{TT}, v{Lr}'); A('v_add_f32 v164, v164, v166'); A('v_add_f32 v165, v165, v167')
        A(f'v_permlane16_swap_b32 v{Lr}, v{TT}'); A(f'v_add_f32 v{Lr}, v{Lr}, v{TT}')
        for ror in (8, 4, 2, 1):
            self.dpp('v_add_f32', Lr, ror); self.dpp('v_add_f32', 164, ror); self.dpp('v_add_f32', 165, ror)
        A(f'v_rcp_f32 v{Lr}, v{Lr}'); A(f'v_mul_f32 v164, v{Lr}, v164'); A(f'v_mul_f32 v165, v{Lr}, v165')
        A('v_cvt_pk_bf16_f32 v164, v164, v165')
        A('s_mov_b32 exec_lo, 0x00010001'); A('s_mov_b32 exec_hi, 0x00010001')
        self.pub(f'buffer_store_dword v164, {vOp}, {sWS}, {oO} offen')
        A('s_mov_b64 exec, -1')
        self.stamp('o_pub')
        self.poll([f'buffer_load_dwordx4 {v(XF,4)}, {vXF}, {sWS}, {oO} offen sc1'], lambda: self.chk_regs(range(XF, XF + 4), 220), 'o')
        self.stamp('o_ok')
        l = self.lab('wo1'); A(f's_cmp_lg_u32 {PASS}, 0'); A(f's_cbranch_scc1 {l}')
        self.load_wave_weights(WB)
        A('s_waitcnt lgkmcnt(0)')
        A(f'{l}:')
        self.gemv_core(WB, RED_B)
        A('s_waitcnt lgkmcnt(0)'); A('s_barrier')
        l5 = self.lab('w_s5'); A(f's_cmp_lg_u32 {W}, 0'); A(f's_cbranch_scc1 {l5}')
        for w in range(4): A(f'ds_read_b128 {v(224+4*w,4)}, {vRedR4} offset:{w*128}')
        A('s_waitcnt lgkmcnt(0)')
        for e in range(4):
            A(f'v_add_f32 v{224+e}, v{224+e}, v{228+e}'); A(f'v_add_f32 v{232+e}, v{232+e}, v{236+e}')
        for e in range(4): A(f'v_add_f32 v{224+e}, v{224+e}, v{232+e}')
        for e in range(4): self.put_tag(224 + e)
        A(f'buffer_store_dwordx4 {v(224,4)}, {vCp}, {sWS}, {oC1} offen sc1')
        self.stamp('c1_pub')
        self.delay(o.d1)
        self.poll([f'buffer_load_dwordx4 {v(164,4)}, {vCg}, {sWS}, {oC1} offen sc1'],
                  lambda: (self.chk_tag(range(164, 168), 220), A('v_cmp_ne_u32 vcc, 0, v220')), 'c1')
        self.stamp('c1_ok')
        for e in range(4): self.strip_tag(164 + e)
        A('v_permlane32_swap_b32 v164, v166'); A('v_permlane32_swap_b32 v165, v167')
        A('v_add_f32 v164, v164, v166'); A('v_add_f32 v165, v165, v167')
        A('v_mov_b32 v168, v164'); A('v_mov_b32 v169, v165')
        A('v_permlane16_swap_b32 v164, v168'); A('v_permlane16_swap_b32 v165, v169')
        A('v_add_f32 v164, v164, v168'); A('v_add_f32 v165, v165, v169')
        A(f'v_lshlrev_b32 v168, 16, {vRES}'); A(f'v_and_b32 v169, 0xffff0000, {vRES}')
        self.dpp('v_add_f32', 164, 8); self.dpp('v_add_f32', 165, 8)
        A('v_add_f32 v164, v164, v168'); A('v_add_f32 v165, v165, v169')
        A('v_cvt_pk_bf16_f32 v164, v164, v165')
        A('s_mov_b32 exec_lo, 0xff'); A('s_mov_b32 exec_hi, 0xff')
        self.pub(f'buffer_store_dword v164, {vXp}, {sWS}, {oX1} offen', FASTA)
        A('s_mov_b64 exec, -1')
        self.stamp('x1_pub')
        A(f'{l5}:')
        A('s_barrier')
        l = self.lab('now2'); A(f's_cmp_lg_u32 {PASS}, 0'); A(f's_cbranch_scc1 {l}')
        self.w2_issue()
        A('s_waitcnt vmcnt(0)'); A('s_barrier')
        self.stamp('w2_landed')
        A(f's_cmp_ge_u32 {W}, 2'); A(f's_cbranch_scc1 {l}')
        A(f's_mov_b32 {T0}, {W2_L}'); self.tr_addr('v236', 'v237', T0)
        A(f's_lshl_b32 {T0}, {W}, 5'); A(f'v_xor_b32 v236, {T0}, v236')
        for t in range(7):
            A(f'ds_read_b64_tr_b16 a[{4*t}:{4*t+1}], v236 offset:{t*2048}'); A(f'ds_read_b64_tr_b16 a[{4*t+2}:{4*t+3}], v236 offset:{t*2048+256}')
        A('s_waitcnt lgkmcnt(0)')
        A(f'{l}:')
        self.poll([f'buffer_load_ushort v164, {vGU}, {sWS}, {oGU} offen sc1', f'buffer_load_ushort v165, {vGU}, {sWS}, {oGU} offen offset:512 sc1',
                   f'buffer_load_dword {vRES8}, {vX8p}, {sWS}, {oX1} offen sc1'],
                  lambda: (A('v_max_u32 v166, v164, v165'), A(f'v_cmp_eq_u32 s[12:13], -1, {vRES8}'), A('v_cmp_eq_u32 vcc, 0xffff, v166'), A('s_or_b64 vcc, vcc, s[12:13]')), 'gu', o.sl_gu)
        self.stamp('gu_ok')
        A('v_lshlrev_b32 v164, 16, v164'); A('v_lshlrev_b32 v165, 16, v165')
        A('v_mul_f32 v166, 0xbfb8aa3b, v164'); A('v_mul_f32 v164, v164, v165'); A('v_exp_f32 v166, v166'); A('v_add_f32 v166, 1.0, v166'); A('v_rcp_f32 v166, v166')
        A('v_mul_f32 v164, v164, v166'); A('v_cvt_pk_bf16_f32 v164, v164, v164')
        A(f'ds_write_b16 {vHW}, v164'); A('s_waitcnt lgkmcnt(0)'); A('s_barrier')
        A(f's_cmp_ge_u32 {W}, 2'); A('s_cbranch_scc1 L_W_TAIL')
        A(f'ds_read_b128 {v(164,4)}, {vHR}'); A(f'ds_read_b128 {v(168,4)}, {vHR} offset:256'); A('s_waitcnt lgkmcnt(0)')
        for r in range(4): A(f'v_mfma_f32_16x16x32_bf16 {v(ACC+4*r,4)}, {v(164,4)}, a[{4*r}:{4*r+3}], 0')
        for r in range(3): A(f'v_mfma_f32_16x16x32_bf16 {v(ACC+4*r,4)}, {v(168,4)}, a[{16+4*r}:{19+4*r}], {v(ACC+4*r,4)}')
        A(f'v_add_f32 v216, v{ACC+15}, v{ACC}'); A(f'v_add_f32 v217, v{ACC+5}, v{ACC+10}'); A('v_add_f32 v216, v216, v217')
        self.put_tag(216)
        lp1 = self.lab('c2p1'); lp2 = self.lab('c2d')
        A(f's_cmp_lg_u32 {PASS}, 0'); A(f's_cbranch_scc1 {lp1}')
        A(f's_add_u32 {T0}, {oC2}, 131072')
        A(f'buffer_store_dword v216, {vC2p}, {sWS}, {oC2} offen sc1'); A(f'buffer_store_dword v216, {vC2p}, {sWS}, {T0} offen sc1')
        A(f's_branch {lp2}')
        A(f'{lp1}:')
        A('s_mov_b64 exec, 0xffff'); A(f'buffer_store_dword v216, {vC2p}, {sWS}, {oC2} offen sc1'); A('s_mov_b64 exec, -1')
        self.stamp('c2_pub')
        A(f's_cmp_lg_u32 {G}, 0'); A('s_cbranch_scc1 L_W_END')
        A(f'{lp2}:')
        self.stamp('c2_pub')
        self.delay(o.d2)
        self.poll([f'buffer_load_dwordx2 v[164:165], {vC2g}, {sWS}, {oC2} offen sc1'],
                  lambda: (self.chk_tag([164, 165], 220), A('v_cmp_ne_u32 vcc, 0, v220')), 'c2')
        self.stamp('c2_ok')
        self.strip_tag(164); self.strip_tag(165)
        A(f'v_lshlrev_b32 v170, 16, {vRES8}'); A(f'v_and_b32 v171, 0xffff0000, {vRES8}')
        self.dpp('v_add_f32', 164, 8); self.dpp('v_add_f32', 165, 8)
        A('v_mov_b32 v168, v164'); A('v_mov_b32 v169, v165')
        A('v_permlane16_swap_b32 v164, v168'); A('v_permlane16_swap_b32 v165, v169')
        A('v_add_f32 v164, v164, v168'); A('v_add_f32 v165, v165, v169')
        A('v_mov_b32 v168, v164'); A('v_mov_b32 v169, v165')
        A('v_permlane32_swap_b32 v164, v168'); A('v_permlane32_swap_b32 v165, v169')
        A('v_add_f32 v164, v164, v168'); A('v_add_f32 v165, v165, v169')
        A('v_add_f32 v164, v164, v170'); A('v_add_f32 v165, v165, v171')
        A('v_cvt_pk_bf16_f32 v164, v164, v165')
        A('s_mov_b64 exec, 0xff')
        lo = self.lab('out'); A(f's_cmp_lg_u32 {PASS}, 0'); A(f's_cbranch_scc1 {lo}')
        self.pub(f'buffer_store_dword v164, {vX8p}, {sWS}, {oX2} offen')
        A('s_mov_b64 exec, -1')
        self.stamp('x2_pub')
        A('L_W_TAIL:')
        A(f's_cmp_lg_u32 {PASS}, 0'); A('s_cbranch_scc1 L_W_END')
        self.next_pass()
        A('s_branch L_W_NEXT')
        A(f'{lo}:')
        A(f'buffer_store_dword v164, {vX8p}, {sOUT}, 0 offen')
        A(f's_or_b32 {T0}, {R}, {W}'); A(f's_cmp_lg_u32 {T0}, 0'); A('s_cbranch_scc1 L_W_END1')
        A(f'v_mov_b32 v168, {TAG32}'); A(f'v_mov_b32 v169, {OFF_EPOCH}'); A('s_mov_b64 exec, 1')
        A(f'buffer_store_dword v168, v169, {sWS}, 0 offen')
        A('L_W_END1:')
        A('s_mov_b64 exec, -1')
        self.stamp('x2_pub')
        A('L_W_END:')
        self.end()

    def build_f(self):
        A = self; o = self.o
        A('L_F:')
        self.qpre()
        self.code_prefetch('L_F', 'L_bail', 1)
        self.v_issue()
        self.k_issue(False)
        if o.pretouch: self.pretouch_early()
        if o.wopre == 'init':
            A('s_waitcnt lgkmcnt(0)'); self.wo_prefetch()
        self.stamp('issued')
        self.common_addr()
        A(f'v_and_b32 v222, 15, {L}'); A('v_lshlrev_b32 v224, 2, v222')
        A(f's_and_b32 {T0}, {R}, 1'); A(f's_lshl_b32 {T0}, {T0}, 9'); A(f's_lshr_b32 {T1}, {R}, 1'); A(f's_lshl_b32 {T1}, {T1}, 6'); A(f's_add_u32 {T0}, {T0}, {T1}')
        A(f'v_add_u32 {vPub}, {T0}, v224')
        self.first_q((3 if o.pretouch else 0) + (10 if o.wopre == 'init' else 0), self.wo_prefetch if o.wopre == 'kland' else None)
        if o.wopre == 'qok': self.wo_prefetch()
        A('s_branch L_F_S2')
        A('L_F_NEXT:')
        self.next_q(o.sl_q)
        A('L_F_S2:')
        self.stamp('q_ok')
        self.s2()
        self.stamp('rs_pub')
        if o.pretouch:
            l = self.lab('nolate'); A(f's_cmp_lg_u32 {PASS}, 0'); A(f's_cbranch_scc1 {l}')
            self.pretouch_late()
            A(f'{l}:')
        lsp = self.lab('spare'); A(f's_cmp_ge_u32 {R}, 14'); A(f's_cbranch_scc1 {lsp}')
        l = self.lab('late'); A(f's_cmp_lg_u32 {PASS}, 0'); A(f's_cbranch_scc1 {l}')
        A(f's_and_b32 {T0}, {R}, 1'); A(f's_cmp_eq_u32 {T0}, 0')
        A('s_cselect_b32 s84, s60, s64'); A('s_cselect_b32 s85, s61, s65'); A('s_mov_b32 s86, 1835008'); A('s_mov_b32 s87, 0x20000')
        self.slice_src('v235', 3584)
        A(f's_mul_i32 {T0}, {W}, {128*3584}'); A(f's_mul_i32 {T1}, {G}, 448'); A(f's_add_u32 {T0}, {T0}, {T1}')
        A(f's_lshr_b32 {T1}, {R}, 1'); A(f's_lshl_b32 {T1}, {T1}, 6'); A(f's_add_u32 {T0}, {T0}, {T1}')
        A(f's_lshl_b32 {T1}, {W}, 13'); A(f's_add_u32 {T1}, {T1}, {W_L}')
        self.dma_slices(sWF, 'v235', T0, 8, 16 * 3584, T1)
        A('s_waitcnt vmcnt(0)')
        self.stamp('f1_landed')
        self.load_wave_weights(WA)
        self.colsum()
        A(f'{l}:')
        self.poll([f'buffer_load_dwordx4 {v(XF,4)}, {vXF}, {sWS}, {oX1} offen sc1'], lambda: self.chk_regs(range(XF, XF + 4), 220), 'x1', o.sl_x1)
        self.stamp('x1_ok')
        self.gemv_core(WA, RED_A, stats=True)
        A('s_waitcnt lgkmcnt(0)'); A('s_barrier')
        l = self.lab('s6w'); A(f's_cmp_lg_u32 {W}, 0'); A(f's_cbranch_scc1 {l}')
        self.ln_finalize_publish(oGU, FAST)
        self.stamp('gu_pub')
        A(f'{l}:')
        A('L_F_TAIL:')
        A(f's_cmp_lg_u32 {PASS}, 0'); A('s_cbranch_scc1 L_F_END')
        self.next_pass()
        A('s_branch L_F_NEXT')
        A(f'{lsp}:')
        A(f's_cmp_lg_u32 {PASS}, 0'); A('s_cbranch_scc1 L_F_END')
        A(f's_sub_u32 {T1}, {R}, 14'); A(f's_lshl_b32 {T1}, {T1}, 2'); A(f's_add_u32 {T1}, {T1}, {W}'); A(f's_mul_i32 {T1}, {T1}, 28672')
        A(f's_mul_i32 {T0}, {G}, {224*1024}'); A(f's_add_u32 {T0}, {T0}, {T1}'); A(f's_mov_b32 m0, {DUM_L}'); A(f's_mov_b32 {T2}, 0')
        lw = self.lab('w2pre'); A(f'{lw}:')
        for k in range(4):
            A(f'buffer_load_dwordx4 {vLin}, {sW2}, {T0} offen {self.o.pre_flag} lds'); A(f's_add_u32 {T0}, {T0}, 1024')
        A(f's_add_u32 {T2}, {T2}, 1'); A(f's_cmp_lt_u32 {T2}, 7'); A(f's_cbranch_scc1 {lw}')
        A('s_branch L_F_TAIL')
        A('L_F_END:')
        self.end()

def emit(opt):
    k = K(opt); k.build()
    body = k.a.finalize()
    head = open('cdna_kernels/' + NAME + '.s.ref').read().split('; Override launch')[0]
    txt = head + f"""; Override launch geometry by editing the next line. Harness parses it; keep it on one line.
; @launch grid=(256,1,1) block=(256,1,1) lds={LDS_SIZE}
.amdgcn_target "amdgcn-amd-amdhsa--gfx950"
.text
.globl {NAME}_kernel
.p2align 8
.type {NAME}_kernel,@function
{NAME}_kernel:
{body}
.section .rodata,"a"
.p2align 6
.amdhsa_kernel {NAME}_kernel
  .amdhsa_next_free_vgpr 288
  .amdhsa_next_free_sgpr 102
  .amdhsa_accum_offset 256
  .amdhsa_group_segment_fixed_size 0
  .amdhsa_kernarg_size 96
  .amdhsa_user_sgpr_count 2
  .amdhsa_user_sgpr_kernarg_segment_ptr 1
  .amdhsa_system_sgpr_workgroup_id_x 1
  .amdhsa_float_denorm_mode_32 3
.end_amdhsa_kernel
"""
    return txt, k

def options(argv=None):
    p = argparse.ArgumentParser()
    p.add_argument('-o', default='cdna_kernels/' + NAME + '.s')
    p.add_argument('--stamps', action='store_true'); p.add_argument('--stamp-only', default=''); p.add_argument('--no-nt', dest='nt', action='store_false')
    p.add_argument('--no-codepf', dest='codepf', action='store_false'); p.add_argument('--waitq', action='store_true'); p.add_argument('--qpre-flag', default='nt'); p.add_argument('--kearly', action='store_true'); p.add_argument('--pretouch', action='store_true'); p.add_argument('--pre-cross', action='store_true'); p.add_argument('--wopre', default='qok'); p.add_argument('--pre-flag', default='')
    p.add_argument('--cyc', action='store_true'); p.add_argument('--spin', type=int, default=0); p.add_argument('--probe', default=''); p.add_argument('--probe-pass', type=int, default=0)
    p.add_argument('--force-slow', action='store_true'); p.add_argument('--d1', type=int, default=0); p.add_argument('--d2', type=int, default=0)
    for n in ('x2', 'gu', 'q', 'x1', 'q0'): p.add_argument('--sl-' + n, dest='sl_' + n, type=int, default=0)
    return p.parse_args(argv)

if __name__ == '__main__':
    opt = options()
    txt, k = emit(opt)
    open(opt.o, 'w').write(txt)
    print('wrote', opt.o, 'instr', len(k.a.ins), 'nops inserted', k.a.inserted, 'stamps', k.stamp_names)
```

```python
import sys, os, argparse
sys.path.insert(0, os.path.dirname(os.path.abspath(__file__)))
from asmgen import Asm

NAME = 'interleave_layers__sliding_block_cached__glu_gated_swiglu__decode'

OFF_Q = 0x00000; OFF_O = 0x04000; OFF_X1 = 0x08000; OFF_GU = 0x0C000; OFF_X2 = 0x10000; OFF_EPOCH = 0x13000; OFF_ML = 0x14000
OFF_Q0T = 0x1C000; OFF_RS = 0x20000; OFF_C1 = 0x120000; OFF_C2 = 0x1A0000
OFF_DIAG = 0x200000
V_L = 0; K_L = 32768; W_L = 65536; W2_L = 98304; DUM_L = 114688
MX = 115712; FX = 115776; PX = 115840; LX = 116864; HX = 117120; QX = 117632
LDS_SIZE = 118784
G, J, W, R = 's4', 's5', 's6', 's7'
sX, sK, sV, sWQ, sWO, sW1, sW3, sW2, sOUT, sDBG, sWS, sWF = [f's[{40+4*k}:{43+4*k}]' for k in range(12)]
def srd_lo(k): return 40 + 4 * k
FAST, PASS, CNT = 's16', 's17', 's18'
T0, T1, T2, T3, T4 = 's19', 's20', 's21', 's22', 's23'
M12 = 's[24:25]'
oQ, oRS, oML, oO, oC1, oX1, oGU, oC2, oX2 = 's26', 's27', 's28', 's29', 's30', 's31', 's32', 's33', 's34'
CEXP = 's35'; XCC = 's39'; FASTA = 's36'; TQ = 's37'; oQ0 = 's38'
MASK4 = 's[8:9]'
TAG32, MASK12 = 's14', 's15'
L = 'v1'
vLin, vAF, vQB, vRSp, vRSg, vMLg, vMLp, vOp, vCp, vCg, vXu, vXp, vPub, vGU = [f'v{k}' for k in range(2, 16)]
KF = 16; VF = 48; XA = 80; OA = 96; NAT = 112; CSV = 116
vMW, vMR, vPW, vPR, vLW, vLR, vHW, vHR, vRES, vRES8, vTAG, vST, vXo, vQL = [f'v{k}' for k in range(117, 131)]
MLQ = 132
QB = 136
ACC = 140
WA = 0; WB = 64; W2F = 128
def v(a, n=1): return f'v{a}' if n == 1 else f'v[{a}:{a+n-1}]'
def ag(a, n=4): return f'a[{a}:{a+n-1}]'
MAXPOLL = 60000
SIZES = {0: 1024, 1: 0x4000000, 2: 0x4000000, 3: 0x400000, 4: 0x400000, 5: 1835008, 6: 1835008, 7: 1835008, 8: 1024, 9: 256, 10: 0x10000000}

class K:
    def __init__(self, opt):
        self.o = opt; self.a = Asm(); self.nlab = 0; self.stamp_names = []; self.tail = []
        self.ld = 'nt' if opt.nt else ''
    def __call__(self, t): self.a(t)
    def lab(self, base):
        self.nlab += 1; return f'L_{base}_{self.nlab}'
    def stamp(self, name):
        A = self
        if self.o.probe == name:
            l = self.lab('probe'); A(f's_cmp_lg_u32 {PASS}, {self.o.probe_pass}'); A(f's_cbranch_scc1 {l}')
            A('s_memrealtime s[92:93]'); A('s_waitcnt lgkmcnt(0)'); A(f'{l}:')
        if not self.o.stamps: return
        if self.o.stamp_only and name not in self.o.stamp_only.split(','): return
        if name not in self.stamp_names: self.stamp_names.append(name)
        k = self.stamp_names.index(name)
        A('s_memrealtime s[88:89]'); A('s_waitcnt lgkmcnt(0)')
        A(f's_lshl_b32 s90, {PASS}, 5'); A(f's_add_u32 s90, s90, {k}'); A('s_mov_b32 s91, m0'); A('s_mov_b32 m0, s90')
        A(f'v_writelane_b32 {vST}, s88, m0'); A('s_mov_b32 m0, s91')
    def flush_stamps(self):
        if not self.o.stamps: return
        A = self
        A('s_mov_b64 exec, -1')
        A(f's_lshl_b32 s90, s2, 2'); A(f's_add_u32 s90, s90, {W}'); A('s_lshl_b32 s90, s90, 8'); A(f's_add_u32 s90, s90, {OFF_DIAG}')
        A(f'v_lshlrev_b32 v255, 2, {L}')
        A(f'buffer_store_dword {vST}, v255, {sWS}, s90 offen')
    def end(self):
        if self.o.spin:
            A = self; l = self.lab('spin'); d = self.lab('spind')
            A('s_waitcnt lgkmcnt(0)')
            A('s_mov_b32 s96, 0'); A(f'{l}:'); A('s_memrealtime s[94:95]'); A('s_waitcnt lgkmcnt(0)'); A('s_sub_u32 s94, s94, s92')
            A('s_add_u32 s96, s96, 1'); A('s_cmp_gt_u32 s96, 200000'); A(f's_cbranch_scc1 {d}')
            A(f's_cmp_lt_u32 s94, {self.o.spin}'); A(f's_cbranch_scc1 {l}'); A(f'{d}:')
        self.flush_stamps(); self('s_endpgm')
    def delay(self, n):
        while n > 0:
            self(f's_nop {min(n,16)-1}'); n -= min(n, 16)

    def poll(self, loads, check, name, sleep=0):
        A = self; lp = self.lab('poll_' + name)
        A(f's_mov_b32 {CNT}, 0')
        A(f'{lp}:')
        for t in loads: A(t)
        A(f's_add_u32 {CNT}, {CNT}, 1'); A(f's_cmp_gt_u32 {CNT}, {MAXPOLL}'); A('s_cbranch_scc1 L_bail')
        A('s_waitcnt vmcnt(0)')
        check()
        if sleep:
            lo = self.lab('pok'); A(f's_cbranch_vccz {lo}'); A(f's_sleep {sleep}'); A(f's_branch {lp}'); A(f'{lo}:')
        else:
            A(f's_cbranch_vccnz {lp}')
    def chk4(self, r, tmp):
        A = self
        A(f'v_max3_u32 v{tmp}, v{r}, v{r+1}, v{r+2}'); A(f'v_max_u32 v{tmp}, v{tmp}, v{r+3}'); A(f'v_cmp_eq_u32 vcc, -1, v{tmp}')
    def chk16(self, r, tmp):
        A = self
        A(f'v_max3_u32 v{tmp}, v{r}, v{r+1}, v{r+2}'); A(f'v_max3_u32 v{tmp+1}, v{r+3}, v{r+4}, v{r+5}')
        A(f'v_max3_u32 v{tmp+2}, v{r+6}, v{r+7}, v{r+8}'); A(f'v_max3_u32 v{tmp+3}, v{r+9}, v{r+10}, v{r+11}')
        A(f'v_max3_u32 v{tmp}, v{tmp}, v{r+12}, v{r+13}'); A(f'v_max3_u32 v{tmp+1}, v{tmp+1}, v{r+14}, v{r+15}')
        A(f'v_max3_u32 v{tmp}, v{tmp}, v{tmp+2}, v{tmp+3}'); A(f'v_max_u32 v{tmp}, v{tmp}, v{tmp+1}'); A(f'v_cmp_eq_u32 vcc, -1, v{tmp}')
    def chk_tag(self, regs, tmp):
        A = self; regs = list(regs)
        A(f'v_bitop3_b32 v{tmp}, v{regs[0]}, v{regs[1]}, {vTAG} bitop3:0x7e')
        if len(regs) == 4:
            A(f'v_bitop3_b32 v{tmp+1}, v{regs[2]}, v{regs[3]}, {vTAG} bitop3:0x7e')
            A(f'v_bitop3_b32 v{tmp}, v{tmp}, v{tmp+1}, {MASK12} bitop3:0xa8')
        else:
            A(f'v_and_b32 v{tmp}, {MASK12}, v{tmp}')
    def put_tag(self, r): self(f'v_bfi_b32 v{r}, {MASK12}, {vTAG}, v{r}')
    def strip_tag(self, r): self(f'v_and_b32 v{r}, 0xfffff000, v{r}')
    def pub(self, texts, flag=FAST):
        A = self; ls = self.lab('slow'); ld = self.lab('pubd')
        if isinstance(texts, str): texts = [texts]
        A(f's_cmp_eq_u32 {flag}, 0'); A(f's_cbranch_scc1 {ls}')
        for t in texts: A(t)
        A(f'{ld}:')
        self.tail.append([f'{ls}:'] + [t + ' sc1' for t in texts] + [f's_branch {ld}'])
    def flush_tail(self):
        for blk in self.tail:
            for t in blk: self(t)
        self.tail = []

    def swap_red(self, op, r, t, which):
        A = self
        A(f'v_mov_b32 v{t}, v{r}'); A(f'v_permlane{which}_swap_b32 v{r}, v{t}'); A(f'{op} v{r}, v{r}, v{t}')
    def dpp(self, op, r, ror):
        self(f'{op}_dpp v{r}, v{r}, v{r} row_ror:{ror} row_mask:0xf bank_mask:0xf')
    def interleave(self, mf, va, per=3):
        va = list(va)
        for m in mf:
            self(m)
            for _ in range(per):
                if va: self(va.pop(0))
        for x in va: self(x)

    def vec_loads(self, srd, soff, frag, masked, flag='sc1', nat=True, addr=None):
        ld = [f'buffer_load_dwordx4 {v(NAT,4)}, {vLin}, {srd}, {soff} offen {flag}'] if nat else []
        if masked: ld.append(f's_mov_b64 exec, {M12}')
        ld += [f'buffer_load_dwordx4 {v(frag+4*m,4)}, {addr or vAF}, {srd}, {soff} offen offset:{256*m} {flag}' for m in range(4)]
        if masked: ld.append('s_mov_b64 exec, -1')
        return ld
    def gemv(self, frag, wbase, stats):
        A = self
        mf = [f'v_mfma_f32_16x16x32_bf16 {v(ACC+4*r,4)}, {v(frag+4*m,4)}, {ag(wbase+16*m+4*r)}, {v(ACC+4*r,4) if m else 0}' for m in range(4) for r in range(4)]
        va = []
        S1, S2, TT = 172, 173, 174
        if stats:
            a = NAT
            A('v_mov_b32 v175, 0x3f803f80')
            va.append(f'v_dot2_f32_bf16 v{S1}, v{a}, v175, 0'); va.append(f'v_dot2_f32_bf16 v{S2}, v{a}, v{a}, 0')
            for k in range(1, 4):
                va.append(f'v_dot2_f32_bf16 v{S1}, v{a+k}, v175, v{S1}'); va.append(f'v_dot2_f32_bf16 v{S2}, v{a+k}, v{a+k}, v{S2}')
            va += ['s_nop 1', f'v_permlane32_swap_b32 v{S1}, v{S2}', f'v_add_f32 v{S1}, v{S1}, v{S2}',
                   f'v_mov_b32 v{TT}, v{S1}', 's_nop 0', f'v_permlane16_swap_b32 v{S1}, v{TT}', f'v_add_f32 v{S1}, v{S1}, v{TT}']
            for ror in (8, 4, 2, 1): va += ['s_nop 0', f'v_add_f32_dpp v{S1}, v{S1}, v{S1} row_ror:{ror} row_mask:0xf bank_mask:0xf']
            va += [f'v_mov_b32 v{S2}, v{S1}', 's_nop 0', f'v_permlane32_swap_b32 v{S1}, v{S2}',
                   f'v_mul_f32 v{S1}, 0x3b000000, v{S1}', f'v_mul_f32 v{S2}, 0x3b000000, v{S2}',
                   f'v_fma_f32 v{S2}, -v{S1}, v{S1}, v{S2}', f'v_max_f32 v{S2}, 0, v{S2}', f'v_add_f32 v{S2}, 0x3727c5ac, v{S2}',
                   f'v_rsq_f32 v{S2}, v{S2}']
        self.interleave(mf, va, per=2)
        A(f'v_add_f32 v176, v{ACC}, v{ACC+5}'); A(f'v_add_f32 v177, v{ACC+10}, v{ACC+15}'); A('v_add_f32 v176, v176, v177')
    def ln_fix(self):
        A = self; l = self.lab('nocs')
        A(f's_cmp_lg_u32 {PASS}, 0'); A(f's_cbranch_scc1 {l}')
        A('v_mov_b32 v177, v176'); A('v_mov_b32 v178, v176'); A('v_permlane32_swap_b32 v177, v178')
        A(f'v_mov_b32 {v(CSV)}, v178'); A(f'v_permlane16_swap_b32 v178, {v(CSV)}')
        A(f'{l}:')
        A(f'v_fma_f32 v176, -v172, {v(CSV)}, v176'); A('v_mul_f32 v176, v173, v176')
    def pack_pairs(self):
        A = self
        A('v_mov_b32_dpp v177, v176 quad_perm:[1,0,3,2] row_mask:0xf bank_mask:0xf'); A('v_cvt_pk_bf16_f32 v176, v176, v177')
    def set_ones(self):
        A = self
        A('s_mov_b32 exec_lo, 0xf000f000'); A('s_mov_b32 exec_hi, 0xf000f000')
        for k in range(16): A(f'v_mov_b32 v{XA+k}, 0x3f803f80')
        A('s_mov_b64 exec, -1')
    def cross_pub(self, soff, last_only_g0):
        A = self
        self.put_tag(176)
        if last_only_g0:
            l1 = self.lab('cp1'); l2 = self.lab('cp2')
            A(f's_cmp_lg_u32 {PASS}, 0'); A(f's_cbranch_scc1 {l1}')
        A(f's_add_u32 {T0}, {soff}, 131072')
        A(f'buffer_store_dword v176, {vCp}, {sWS}, {soff} offen sc1'); A(f'buffer_store_dword v176, {vCp}, {sWS}, {T0} offen sc1')
        if last_only_g0:
            A(f'{l2}:')
            self.tail.append([f'{l1}:', 's_mov_b64 exec, 0xffff', f'buffer_store_dword v176, {vCp}, {sWS}, {soff} offen sc1', 's_mov_b64 exec, -1',
                              f's_cmp_lg_u32 {G}, 0', 's_cbranch_scc1 L_W_END', f's_branch {l2}'])
    def cross_reduce(self, soff, res, delay, name):
        A = self
        self.delay(delay)
        self.poll([f'buffer_load_dwordx2 v[164:165], {vCg}, {sWS}, {soff} offen sc1'],
                  lambda: (self.chk_tag([164, 165], 168), A('v_cmp_ne_u32 vcc, 0, v168')), name)
        self.stamp(name + '_ok')
        self.strip_tag(164); self.strip_tag(165)
        A(f'v_lshlrev_b32 v167, 16, {res}')
        A('v_permlane32_swap_b32 v164, v165'); A('v_add_f32 v164, v164, v165')
        self.swap_red('v_add_f32', 164, 165, 16)
        self.dpp('v_add_f32', 164, 8)
        A('v_add_f32 v164, v164, v167')
        A('v_mov_b32 v165, v164'); A('v_permlane32_swap_b32 v164, v165'); A('v_cvt_pk_bf16_f32 v164, v164, v165')

    def tr_addr(self, d0, base):
        A = self
        A(f'v_lshrrev_b32 v222, 4, {L}'); A('v_lshlrev_b32 v223, 9, v222')
        A(f'v_xor_b32 v222, {W}, v222'); A('v_and_b32 v222, 1, v222'); A('v_lshl_add_u32 v223, v222, 5, v223')
        A(f'v_and_b32 v222, 12, {L}'); A('v_lshl_add_u32 v223, v222, 4, v223')
        A(f'v_and_b32 v222, 3, {L}'); A('v_lshl_add_u32 v223, v222, 3, v223')
        A(f'v_add_u32 {d0}, {base}, v223')
    def tile_weights(self, abase, lds, nt):
        A = self
        self.tr_addr('v224', lds)
        for t in range(nt):
            A(f'ds_read_b64_tr_b16 {ag(abase+4*t,2)}, v224 offset:{t*2048}'); A(f'ds_read_b64_tr_b16 {ag(abase+4*t+2,2)}, v224 offset:{t*2048+256}')
        A('s_waitcnt lgkmcnt(0)')
    def slice_src(self, dst, stride):
        A = self
        A(f'v_lshrrev_b32 v222, 5, {L}'); A(f'v_and_b32 v223, 3, {L}'); A('v_lshlrev_b32 v222, 1, v222'); A('v_xor_b32 v222, v222, v223')
        A(f'v_lshrrev_b32 v223, 2, {L}'); A(f'v_mul_u32_u24 v223, {stride}, v223'); A(f'v_lshl_add_u32 {dst}, v222, 4, v223')
    def dma_slices(self, srd, vsrc, soff, n, step, lds_base, oob_from=None, flag=None):
        A = self
        if flag is None: flag = self.ld
        for k in range(n):
            if k % 4 == 0:
                if k == 0: A(f's_mov_b32 m0, {lds_base}')
                else: A('s_add_u32 m0, m0, 4096')
            if oob_from is not None and k == oob_from[0]: A(f's_add_u32 {soff}, {soff}, {oob_from[1]}')
            A(f'buffer_load_dwordx4 {vsrc}, {srd}, {soff} offen offset:{(k%4)*1024} {flag} lds')
            if k + 1 < n:
                d = step - 1024 if (k % 4) != 3 else step + 3072
                A(f's_add_u32 {soff}, {soff}, {d}')

    def kv_base(self):
        A = self
        A(f's_lshl_b32 {T3}, {G}, 23'); A(f's_lshl_b32 {T1}, {W}, 18'); A(f's_add_u32 {T3}, {T3}, {T1}')
        A(f's_lshl_b32 {T1}, {J}, 12'); A(f's_add_u32 {T3}, {T3}, {T1}'); A(f's_add_u32 {T3}, {T3}, {28672*256}')
        A(f's_add_u32 {T4}, {T3}, 131072'); A(f's_lshl_b32 {T2}, {W}, 13')
    def v_issue(self):
        A = self
        self.kv_base()
        A(f'v_lshrrev_b32 v222, 4, {L}'); A(f'v_and_b32 v224, 15, {L}'); A('v_lshlrev_b32 v223, 1, v222'); A('v_lshlrev_b32 v225, 8, v222')
        A('v_xor_b32 v223, v223, v224'); A('v_lshl_add_u32 v226, v223, 4, v225'); A('v_xor_b32 v227, 128, v226')
        for T in range(2):
            A(f's_add_u32 m0, {T2}, {V_L + T*4096}')
            for n in range(4): A(f'buffer_load_dwordx4 v{226+(n&1)}, {sV}, {T4 if T else T3} offen offset:{n*1024} {self.ld} lds')
    def k_issue(self, rebase):
        A = self
        if rebase: self.kv_base()
        A(f'v_lshrrev_b32 v222, 4, {L}'); A(f'v_and_b32 v224, 15, {L}'); A('v_lshlrev_b32 v225, 8, v222'); A('v_xor_b32 v223, v222, v224')
        A('v_lshl_add_u32 v228, v223, 4, v225')
        for n in range(1, 4): A(f'v_xor_b32 v{228+n}, {64*n}, v228')
        for T in range(2):
            A(f's_add_u32 m0, {T2}, {K_L + T*4096}')
            for n in range(4): A(f'buffer_load_dwordx4 v{228+n}, {sK}, {T4 if T else T3} offen offset:{n*1024} {self.ld} lds')
    def v_frags(self):
        A = self
        A(f'v_lshrrev_b32 v222, 4, {L}'); A(f'v_bfe_u32 v223, {L}, 2, 2'); A('v_lshl_add_u32 v222, v222, 2, v223')
        A('v_and_b32 v223, 7, v222'); A(f's_lshl_b32 {T0}, {W}, 1'); A(f'v_xor_b32 v223, {T0}, v223'); A('v_lshlrev_b32 v223, 5, v223')
        A('v_lshl_add_u32 v222, v222, 8, v223'); A(f'v_and_b32 v223, 3, {L}'); A('v_lshl_add_u32 v222, v223, 3, v222'); A('v_xor_b32 v223, 32, v222')
        for U in range(2):
            for w in range(4):
                d = VF + 16 * U + 4 * w
                A(f'ds_read_b64_tr_b16 {v(d,2)}, v{222+U} offset:{V_L + w*8192}')
                A(f'ds_read_b64_tr_b16 {v(d+2,2)}, v{222+U} offset:{V_L + w*8192 + 4096}')
    def k_frags(self, b=232):
        A = self
        A(f'v_and_b32 v{b}, 15, {L}'); A(f'v_lshrrev_b32 v{b+1}, 4, {L}'); A(f'v_xor_b32 v{b+1}, v{b+1}, v{b}'); A(f'v_lshlrev_b32 v{b+1}, 4, v{b+1}')
        A(f'v_lshl_add_u32 v{b}, v{b}, 8, v{b+1}'); A(f's_lshl_b32 {T0}, {W}, 13'); A(f'v_add_u32 v{b}, {T0}, v{b}')
        for t in range(1, 4): A(f'v_xor_b32 v{b+t}, {64*t}, v{b}')
        for T in range(2):
            for t in range(4): A(f'ds_read_b128 {v(KF+16*T+4*t,4)}, v{b+t} offset:{K_L + T*4096}')

    def first_q(self, extra=0):
        A = self
        A(f's_waitcnt vmcnt({8+extra})'); A('s_barrier')
        self.stamp('V_landed')
        A(f'v_lshlrev_b32 v238, 5, {L}')
        ld = [f'buffer_load_dwordx4 v[224:227], v238, {sWS}, {oQ0} offen sc1', f'buffer_load_dwordx4 v[228:231], v238, {sWS}, {oQ0} offen offset:16 sc1']
        l0 = self.lab('fq_n0'); A(f's_cmp_lg_u32 {W}, 0'); A(f's_cbranch_scc1 {l0}')
        for t in ld: A(t)
        A(f'{l0}:')
        self.v_frags()
        lb = self.lab('fq_b1'); l1 = self.lab('fq_k'); l2 = self.lab('fq_k2')
        A(f's_cmp_lg_u32 {W}, 0'); A(f's_cbranch_scc1 {l1}')
        A(f's_waitcnt vmcnt({2+extra})'); A(f's_branch {l2}')
        A(f'{l1}:'); A(f's_waitcnt vmcnt({extra})')
        A(f'{l2}:')
        self.stamp('K_landed')
        self.k_frags()
        A(f's_cmp_lg_u32 {W}, 0'); A(f's_cbranch_scc1 {lb}')
        lp = self.lab('q0'); lo = self.lab('q0ok')
        A(f's_mov_b32 {CNT}, 0'); A(f'v_mov_b32 v221, {TQ}')
        A(f'{lp}:')
        A('s_waitcnt vmcnt(0)')
        for k in range(4): A(f'v_bitop3_b32 v{216+k}, v{224+2*k}, v{225+2*k}, v221 bitop3:0x7e')
        A('v_or3_b32 v216, v216, v217, v218'); A('v_or_b32 v216, v216, v219')
        A('v_and_b32 v217, 0xfff0, v216'); A('v_cmp_ne_u32 vcc, 0, v217')
        A(f's_cbranch_vccz {lo}')
        if self.o.sl_q0: A(f's_sleep {self.o.sl_q0}')
        for t in ld: A(t)
        A(f's_add_u32 {CNT}, {CNT}, 1'); A(f's_cmp_gt_u32 {CNT}, {MAXPOLL}'); A('s_cbranch_scc1 L_bail')
        A(f's_branch {lp}')
        A(f'{lo}:')
        A('v_and_b32 v217, 15, v216'); A('v_cmp_ne_u32 vcc, 0, v217'); A(f's_mov_b32 {T0}, 0x07060302')
        for k in range(4): A(f'v_perm_b32 v{QB+k}, v{225+2*k}, v{224+2*k}, {T0}')
        A('s_cmp_eq_u64 vcc, 0'); A(f's_cselect_b32 {T1}, 1, 0')
        if self.o.force_slow: A(f's_mov_b32 {T1}, 0')
        A(f'ds_write_b128 {vQL}, {v(QB,4)}')
        A(f'v_mov_b32 v216, {T1}'); A(f'v_mov_b32 v217, {FX}'); A('ds_write_b32 v217, v216')
        A(f'{lb}:')
        A('s_waitcnt lgkmcnt(0)'); A('s_barrier')
        A(f'v_mov_b32 v217, {FX}'); A(f'ds_read_b128 {v(QB,4)}, {vQL}'); A('ds_read_b32 v216, v217')
        A('s_waitcnt lgkmcnt(0)')
        A(f'v_readfirstlane_b32 {FAST}, v216')
    def next_q(self, sleep=0):
        A = self
        lb = self.lab('nq_b1'); A(f's_cmp_lg_u32 {W}, 0'); A(f's_cbranch_scc1 {lb}')
        self.poll([f'buffer_load_dwordx4 {v(QB,4)}, {vLin}, {sWS}, {oQ} offen sc1'], lambda: self.chk4(QB, 220), 'q', sleep)
        A(f'ds_write_b128 {vQL}, {v(QB,4)}'); A('s_waitcnt lgkmcnt(0)')
        A(f'{lb}:')
        A('s_barrier')
        lc = self.lab('nq_c'); A(f's_cmp_eq_u32 {W}, 0'); A(f's_cbranch_scc1 {lc}')
        A(f'ds_read_b128 {v(QB,4)}, {vQL}'); A('s_waitcnt lgkmcnt(0)')
        A(f'{lc}:')

    def s2(self):
        A = self
        D = lambda T, t: ACC + 16 * T + 4 * t
        ST0, ST1, M, TT = 180, 184, 188, 189
        for T in range(2):
            for t in range(4): A(f'v_mfma_f32_16x16x32_bf16 {v(D(T,t),4)}, {v(KF+16*T+4*t,4)}, {v(QB,4)}, 0')
        for T, ST in ((0, ST0), (1, ST1)):
            for t, ror in ((1, 12), (2, 8), (3, 4)):
                for r in range(4):
                    src1 = D(T, 0) + r if t == 1 else ST + r
                    A(f'v_add_f32_dpp v{ST+r}, v{D(T,t)+r}, v{src1} row_ror:{ror} row_mask:0xf bank_mask:0xf')
        A(f'v_max3_f32 v{M}, v{ST0}, v{ST0+1}, v{ST0+2}'); A(f'v_max3_f32 v{TT}, v{ST0+3}, v{ST1}, v{ST1+1}')
        A(f'v_max3_f32 v{M}, v{M}, v{ST1+2}, v{ST1+3}'); A(f'v_max_f32 v{M}, v{M}, v{TT}')
        self.swap_red('v_max_f32', M, TT, 16); self.swap_red('v_max_f32', M, TT, 32)
        A('s_mov_b64 exec, 15'); A(f'ds_write_b32 {vMW}, v{M}'); A('s_mov_b64 exec, -1')
        A('s_waitcnt lgkmcnt(0)'); A('s_barrier')
        A(f'ds_read_b128 {v(192,4)}, {vMR}'); A('s_waitcnt lgkmcnt(0)')
        A(f'v_max3_f32 v{M}, v192, v193, v194'); A(f'v_max_f32 v{M}, v{M}, v195'); A(f'v_mul_f32 v{M}, {CEXP}, v{M}')
        for k in range(8): A(f'v_fma_f32 v{ST0+k}, v{ST0+k}, {CEXP}, -v{M}')
        for k in range(8): A(f'v_exp_f32 v{ST0+k}, v{ST0+k}')
        for k in range(4): A(f'v_cvt_pk_bf16_f32 v{192+k}, v{ST0+2*k}, v{ST0+2*k+1}')
        A(f's_mov_b64 exec, {MASK4}'); A(f'ds_write_b128 {vPW}, {v(192,4)}'); A('s_mov_b64 exec, -1')
        A(f'v_add_f32 v{TT}, v{ST0}, v{ST0+1}'); A(f'v_add_f32 v196, v{ST0+2}, v{ST0+3}'); A(f'v_add_f32 v197, v{ST0+4}, v{ST0+5}'); A(f'v_add_f32 v198, v{ST0+6}, v{ST0+7}')
        A(f'v_add_f32 v{TT}, v{TT}, v196'); A('v_add_f32 v197, v197, v198'); A(f'v_add_f32 v{TT}, v{TT}, v197')
        A(f's_mov_b64 exec, {MASK4}'); A(f'ds_write_b32 {vLW}, v{TT}'); A('s_mov_b64 exec, -1')
        A('s_waitcnt lgkmcnt(0)'); A('s_barrier')
        PB = 192
        for w in range(4): A(f'ds_read_b128 {v(PB+4*w,4)}, {vPR} offset:{w*256}')
        A(f'ds_read_b32 v190, {vLR}')
        A('s_waitcnt lgkmcnt(0)')
        OT0, OT1 = 208, 212
        mf = [f'v_mfma_f32_16x16x32_bf16 {v(OT,4)}, {v(VF+16*U+4*w,4)}, {v(PB+4*w,4)}, {v(OT,4) if w else 0}' for w in range(4) for U, OT in ((0, OT0), (1, OT1))]
        va = ['v_add_f32_dpp v190, v190, v190 row_ror:4 row_mask:0xf bank_mask:0xf', f'v_mov_b32 v{MLQ}, v{M}',
              'v_add_f32_dpp v190, v190, v190 row_ror:8 row_mask:0xf bank_mask:0xf',
              'v_mov_b32 v191, v190', 'v_permlane16_swap_b32 v190, v191', 'v_add_f32 v190, v190, v191',
              'v_mov_b32 v191, v190', 'v_permlane32_swap_b32 v190, v191', f'v_add_f32 v{MLQ+1}, v190, v191']
        self.interleave(mf, va, per=2)
        lm = self.lab('noml')
        A(f's_cmp_lg_u32 {W}, 3'); A(f's_cbranch_scc1 {lm}')
        A('s_mov_b64 exec, 15'); self.pub(f'buffer_store_dwordx4 {v(MLQ,4)}, {vMLp}, {sWS}, {oML} offen'); A('s_mov_b64 exec, -1')
        A(f'{lm}:')
        for k in range(8): self.put_tag(OT0 + k)
        A(f's_mov_b64 exec, {MASK4}')
        self.pub([f'buffer_store_dwordx4 {v(OT0,4)}, {vRSp}, {sWS}, {oRS} offen', f'buffer_store_dwordx4 {v(OT1,4)}, {vRSp}, {sWS}, {oRS} offen offset:16'])
        A('s_mov_b64 exec, -1')

    def common_addr(self):
        A = self
        A(f'v_and_b32 v222, 15, {L}'); A(f'v_lshrrev_b32 v223, 4, {L}')
        A('v_lshlrev_b32 v224, 4, v223'); A('v_and_b32 v225, 3, v222')
        A('v_lshlrev_b32 v226, 4, v225'); A(f'v_lshl_add_u32 {vAF}, v223, 6, v226')
        A(f'v_add_u32 {vQL}, {QX}, {vLin}')
        A(f's_lshl_b32 {T0}, {W}, 12'); A(f's_lshl_b32 {T1}, {J}, 5'); A(f's_add_u32 {T0}, {T0}, {T1}')
        A('v_lshlrev_b32 v226, 14, v222'); A('v_lshl_add_u32 v226, v223, 10, v226'); A(f'v_add_u32 {vRSp}, {T0}, v226')
        A(f's_lshl_b32 {T1}, {J}, 4'); A('v_lshlrev_b32 v226, 9, v225'); A(f'v_add_u32 {vMLp}, {T1}, v226')
        A(f's_lshl_b32 {T0}, {W}, 2'); A(f's_add_u32 {T0}, {T0}, {MX}'); A('v_lshlrev_b32 v226, 4, v225'); A(f'v_add_u32 {vMW}, {T0}, v226')
        A(f'v_add_u32 {vMR}, {MX}, v226')
        A('v_lshlrev_b32 v227, 6, v225'); A('v_add_u32 v226, v227, v224')
        A(f'v_add_u32 {vPR}, {PX}, v226'); A(f's_lshl_b32 {T0}, {W}, 8'); A(f'v_add_u32 {vPW}, {T0}, {vPR}')
        A(f's_lshl_b32 {T0}, {W}, 4'); A(f's_add_u32 {T1}, {T0}, {LX}'); A('v_lshl_add_u32 v228, v223, 2, v227'); A(f'v_add_u32 {vLW}, {T1}, v228')
        A(f'v_and_b32 v228, 60, {L}'); A('v_add_u32 v228, v228, v227'); A(f'v_add_u32 {vLR}, {LX}, v228')
        A('s_mov_b32 s8, 0x000f000f'); A('s_mov_b32 s9, 0x000f000f'); A('s_mov_b32 s24, 0x0fff0fff'); A('s_mov_b32 s25, 0x0fff0fff')
        A(f's_mov_b32 {CEXP}, 0x3e0293ee')
        A(f's_lshl_b32 {T0}, {G}, 10')
        for r, off in ((oQ, OFF_Q), (oO, OFF_O), (oX1, OFF_X1), (oGU, OFF_GU), (oX2, OFF_X2)): A(f's_add_u32 {r}, {T0}, {off}')
        A(f's_lshl_b32 {T0}, {G}, 11'); A(f's_add_u32 {oML}, {T0}, {OFF_ML}'); A(f's_add_u32 {oQ0}, {T0}, {OFF_Q0T}')
        A(f's_lshl_b32 {T0}, {G}, 16'); A(f's_add_u32 {oRS}, {T0}, {OFF_RS}')
        A(f's_mov_b32 {oC1}, {OFF_C1}'); A(f's_mov_b32 {oC2}, {OFF_C2}')
        for k in (4, 5, 6, 7, 8):
            A(f's_mov_b32 s{srd_lo(k)+2}, {SIZES[k]}'); A(f's_mov_b32 s{srd_lo(k)+3}, 0x20000')
        A(f's_mov_b32 {MASK12}, 0xfff')
        A('s_waitcnt lgkmcnt(0)')
        A(f's_add_u32 {TAG32}, {TAG32}, 1'); A(f's_and_b32 {T0}, {TAG32}, 0xfff'); A(f'v_mov_b32 {vTAG}, {T0}')
        A(f's_lshl_b32 {TQ}, {T0}, 4'); A(f's_or_b32 {TQ}, {TQ}, {XCC}')
        A(f's_and_b32 {T0}, {TAG32}, 0xfffffff0'); A(f's_or_b32 {T0}, {T0}, {XCC}')
        A(f'v_mov_b32 v{MLQ+2}, {TAG32}'); A(f'v_mov_b32 v{MLQ+3}, {T0}')

    def next_pass(self):
        A = self
        for r in (oQ, oO, oX1, oGU): A(f's_add_u32 {r}, {r}, 8192')
        A(f's_add_u32 {oML}, {oML}, 16384')
        A(f's_add_u32 {oRS}, {oRS}, 524288'); A(f's_add_u32 {oC1}, {oC1}, 262144'); A(f's_add_u32 {oC2}, {oC2}, 262144')
        A(f's_mov_b32 {PASS}, 1')

    def small_clear(self):
        A = self; l = self.lab('noclr')
        A(f's_cmp_lg_u32 {W}, 3'); A(f's_cbranch_scc1 {l}')
        for k in range(4): A(f'v_mov_b32 v{232+k}, -1')
        A(f'v_lshrrev_b32 v236, 2, {L}'); A(f'v_and_b32 v237, 3, {L}'); A('v_lshlrev_b32 v236, 13, v236'); A('v_lshl_add_u32 v236, v237, 4, v236')
        A(f's_lshl_b32 {T0}, {G}, 10'); A(f's_lshl_b32 {T1}, {R}, 6'); A(f's_add_u32 {T0}, {T0}, {T1}')
        A('s_mov_b32 exec_lo, -1'); A('s_mov_b32 exec_hi, 15')
        A(f'buffer_store_dwordx4 {v(232,4)}, v236, {sWS}, {T0} offen sc1')
        A('s_mov_b64 exec, -1')
        A(f'{l}:')
    def qpre(self, nrows=4):
        A = self
        if nrows == 4:
            A(f's_lshl_b32 {T0}, {J}, 17'); A(f's_lshl_b32 {T1}, {W}, 15')
        else:
            A(f's_lshl_b32 {T0}, {R}, 18'); A(f's_lshl_b32 {T1}, {W}, 16')
        A(f's_add_u32 {T0}, {T0}, {T1}'); A(f's_lshl_b32 {T1}, {G}, 10'); A(f's_add_u32 {T0}, {T0}, {T1}')
        A(f's_mov_b32 m0, {DUM_L}')
        for k in range(nrows):
            A(f'buffer_load_dwordx4 {vLin}, {sWQ}, {T0} offen {self.ld} lds')
            if k < nrows - 1: A(f's_add_u32 {T0}, {T0}, 8192')
    def code_prefetch(self, lo, hi, n):
        if not self.o.codepf: return
        A = self; l = self.lab('nopf'); pc = self.lab('pc')
        A(f's_cmp_lg_u32 {W}, 2'); A(f's_cbranch_scc1 {l}')
        A('s_getpc_b64 s[10:11]'); A(f'{pc}:')
        A(f's_sub_u32 s10, s10, {pc}-{lo}'); A('s_subb_u32 s11, s11, 0')
        A(f'v_lshlrev_b32 v238, 6, {L}')
        for k in range(n):
            A(f'v_min_u32 v239, {hi}-{lo}-4, v238'); A('global_load_dword v255, v239, s[10:11]')
            if k + 1 < n: A('v_add_u32 v238, 4096, v238')
        A(f'{l}:')
    def wo_prefetch(self):
        A = self
        A(f's_add_u32 {T1}, {G}, 1'); A(f's_lshl_b32 {T1}, {T1}, 19')
        A('s_mov_b32 s84, s56'); A('s_mov_b32 s85, s57'); A(f's_mov_b32 s86, {T1}'); A('s_mov_b32 s87, 0x20000')
        A(f's_lshl_b32 {T1}, {R}, 2'); A(f's_add_u32 {T1}, {T1}, {W}'); A(f's_mul_i32 {T1}, {T1}, 10240'); A(f's_lshl_b32 {T0}, {G}, 19'); A(f's_add_u32 {T0}, {T0}, {T1}')
        A(f's_mov_b32 m0, {DUM_L}')
        for k in range(10):
            A(f'buffer_load_dwordx4 {vLin}, {sWF}, {T0} offen lds')
            if k < 9: A(f's_add_u32 {T0}, {T0}, 1024')
    def pretouch_early(self):
        A = self
        A(f's_lshl_b32 {T0}, {R}, 2'); A(f's_add_u32 {T0}, {T0}, {W}')
        A(f's_lshl_b32 {T1}, {T0}, 10'); A(f's_lshl_b32 {T2}, {G}, 16'); A(f's_add_u32 {T1}, {T1}, {T2}'); A(f's_add_u32 {T1}, {T1}, {OFF_RS}')
        A(f's_mov_b32 m0, {DUM_L}')
        A(f'buffer_load_dwordx4 {vLin}, {sWS}, {T1} offen lds')
        A(f's_lshr_b32 {T2}, {T0}, 1'); A(f's_lshl_b32 {T2}, {T2}, 14'); A(f's_and_b32 {T3}, {T0}, 1'); A(f's_lshl_b32 {T3}, {T3}, 10'); A(f's_add_u32 {T2}, {T2}, {T3}')
        A(f's_lshl_b32 {T3}, {G}, 11'); A(f's_add_u32 {T2}, {T2}, {T3}'); A(f's_add_u32 {T2}, {T2}, {OFF_ML}')
        A(f's_cmp_lt_u32 {T0}, 4'); A(f's_cselect_b32 {T2}, {T2}, 0x10000000')
        A(f'buffer_load_dwordx4 {vLin}, {sWS}, {T2} offen lds')
        A(f's_add_u32 {T1}, {T1}, 524288')
        A(f'buffer_load_dwordx4 {vLin}, {sWS}, {T1} offen lds')
    def pretouch_late(self):
        A = self
        A(f's_lshl_b32 {T0}, {R}, 2'); A(f's_add_u32 {T0}, {T0}, {W}')
        A(f's_lshl_b32 {T1}, {T0}, 13'); A(f's_lshl_b32 {T2}, {G}, 10'); A(f's_add_u32 {T1}, {T1}, {T2}')
        A(f's_cmp_lt_u32 {T0}, 9'); A(f's_cselect_b32 {T1}, {T1}, 0x10000000')
        A(f's_mov_b32 m0, {DUM_L}')
        A(f'buffer_load_dwordx4 {vLin}, {sWS}, {T1} offen lds')
        if self.o.pre_cross:
            A(f's_lshr_b32 {T1}, {T0}, 5'); A(f's_lshl_b32 {T1}, {T1}, 18'); A(f's_and_b32 {T2}, {T0}, 31'); A(f's_lshl_b32 {T2}, {T2}, 10'); A(f's_add_u32 {T1}, {T1}, {T2}')
            A(f's_lshl_b32 {T3}, {G}, 15'); A(f's_add_u32 {T1}, {T1}, {T3}')
            A(f's_add_u32 {T2}, {T1}, {OFF_C1}')
            A(f'buffer_load_dwordx4 {vLin}, {sWS}, {T2} offen lds')
            A(f's_add_u32 {T2}, {T1}, {OFF_C2}')
            A(f's_cmp_lt_u32 {T0}, 32'); A(f's_cselect_b32 {T4}, 1, 0'); A(f's_cmp_eq_u32 {G}, 0'); A(f's_cselect_b32 {T4}, 1, {T4}')
            A(f's_cmp_eq_u32 {T4}, 1'); A(f's_cselect_b32 {T2}, {T2}, 0x10000000')
            A(f'buffer_load_dwordx4 {vLin}, {sWS}, {T2} offen lds')
    def w2_issue(self):
        A = self
        self.slice_src('v235', 1024)
        A(f's_mul_i32 {T0}, {G}, {224*1024}'); A(f's_lshl_b32 {T1}, {W}, 16'); A(f's_add_u32 {T0}, {T0}, {T1}'); A(f's_lshl_b32 {T1}, {R}, 6'); A(f's_add_u32 {T0}, {T0}, {T1}')
        A(f's_lshl_b32 {T1}, {W}, 12'); A(f's_add_u32 {T1}, {T1}, {W2_L}')
        A(f's_cmp_eq_u32 {W}, 3'); A(f's_cselect_b32 {T2}, 0x10000000, 0')
        self.dma_slices(sW2, 'v235', T0, 4, 16 * 1024, T1, oob_from=(2, T2))

    def build(self):
        A = self
        A('s_cmp_ge_u32 s2, 256'); A('s_cbranch_scc1 L_exit')
        if self.o.stamps or self.o.spin: A('s_memrealtime s[92:93]')
        for k, off in ((3, 24), (2, 16), (1, 8), (10, 88), (0, 0)): A(f's_load_dwordx2 s[{srd_lo(k)}:{srd_lo(k)+1}], s[0:1], {off}')
        A(f'v_and_b32 {L}, 63, v0'); A('v_lshrrev_b32 v222, 6, v0'); A(f's_and_b32 {G}, s2, 7'); A(f'v_readfirstlane_b32 {W}, v222')
        A(f's_lshr_b32 {J}, s2, 3'); A(f's_and_b32 {R}, {J}, 15'); A(f'v_lshlrev_b32 {vLin}, 4, {L}')
        for k in (3, 2, 1, 10, 0):
            A(f's_mov_b32 s{srd_lo(k)+2}, {SIZES[k]}'); A(f's_mov_b32 s{srd_lo(k)+3}, 0x20000')
        A(f's_getreg_b32 {XCC}, hwreg(HW_REG_XCC_ID, 0, 4)')
        A(f's_mov_b32 {FAST}, 0'); A(f's_mov_b32 {FASTA}, 0'); A(f's_mov_b32 {PASS}, 0')
        if self.o.stamps: A(f'v_mov_b32 {vST}, 0')
        A('s_waitcnt lgkmcnt(0)')
        if self.o.stamps:
            A('s_mov_b32 m0, 63'); A(f'v_writelane_b32 {vST}, s92, m0')
        A(f's_load_dword {TAG32}, s[80:81], {OFF_EPOCH}')
        for k, off in ((4, 32), (5, 48), (6, 56), (7, 64), (8, 72)): A(f's_load_dwordx2 s[{srd_lo(k)}:{srd_lo(k)+1}], s[0:1], {off}')
        A(f's_cmp_ge_u32 {J}, 16'); A('s_cbranch_scc1 L_F')
        self.build_w()
        self.build_f()
        A('L_bail:')
        self.end()
        A('L_exit:'); A('s_endpgm')

    def build_w(self):
        A = self; o = self.o
        A('L_W:')
        if not o.fqpre: self.qpre()
        self.small_clear()
        self.code_prefetch('L_W', 'L_F', 2)
        self.slice_src('v235', 8192)
        A(f's_lshl_b32 {T0}, {W}, 20'); A(f's_lshl_b32 {T1}, {G}, 10'); A(f's_add_u32 {T0}, {T0}, {T1}'); A(f's_lshl_b32 {T1}, {R}, 6'); A(f's_add_u32 {T0}, {T0}, {T1}')
        A(f's_lshl_b32 {T1}, {W}, 13'); A(f's_add_u32 {T1}, {T1}, {W_L}')
        if o.waitq: A('s_waitcnt vmcnt(0)')
        self.stamp('qpre_landed')
        self.dma_slices(sWQ, 'v235', T0, 8, 16 * 8192, T1)
        A(f'v_and_b32 v225, 3, {L}'); A(f'v_lshrrev_b32 v223, 4, {L}'); A('v_lshlrev_b32 v224, 4, v223'); A('v_lshl_add_u32 v236, v225, 6, v224')
        A('s_mov_b32 s24, 0x0fff0fff'); A('s_mov_b32 s25, 0x0fff0fff')
        self.set_ones()
        A(f'v_and_b32 v224, 7, {L}'); A(f'v_lshrrev_b32 v225, 5, {L}')
        A(f's_lshl_b32 {T1}, {R}, 6'); A(f's_and_b32 {T2}, {W}, 1'); A(f's_lshl_b32 {T3}, {T2}, 5'); A(f's_add_u32 {T1}, {T1}, {T3}')
        A('v_lshlrev_b32 v226, 2, v224'); A(f'v_add_u32 {vXo}, {T1}, v226'); A(f'v_lshl_add_u32 v237, v225, 1, {vXo}')
        for t in self.vec_loads(sX, 0, XA, True, '', addr='v236'): A(t)
        A(f'buffer_load_ushort {vRES}, v237, {sX}, 0 offen')
        A(f's_lshr_b32 {T1}, {R}, 2'); A(f's_lshl_b32 {T1}, {T1}, 8'); A(f's_and_b32 {T3}, {R}, 3'); A(f's_lshl_b32 {T3}, {T3}, 4'); A(f's_add_u32 {T1}, {T1}, {T3}')
        A(f's_lshl_b32 {T3}, {T2}, 7'); A(f's_add_u32 {T1}, {T1}, {T3}')
        A('v_lshrrev_b32 v226, 2, v224'); A('v_and_b32 v227, 3, v224'); A('v_lshlrev_b32 v226, 6, v226'); A('v_lshl_add_u32 v226, v227, 2, v226')
        A(f'v_add_u32 {vXp}, {T1}, v226'); A(f'v_lshl_add_u32 {vXu}, v225, 1, {vXp}')
        if not o.vlate:
            self.v_issue()
            self.stamp('issued')
        self.common_addr()
        A(f'v_and_b32 v222, 31, {L}'); A(f'v_lshrrev_b32 v223, 5, {L}')
        A(f's_lshl_b32 {T0}, {R}, 12'); A(f's_lshl_b32 {T1}, {W}, 10'); A(f's_add_u32 {T0}, {T0}, {T1}')
        A('v_lshlrev_b32 v224, 5, v222'); A('v_lshl_add_u32 v224, v223, 4, v224'); A(f'v_add_u32 {vRSg}, {T0}, v224')
        A(f's_lshr_b32 {T0}, {R}, 2'); A(f's_lshl_b32 {T0}, {T0}, 9'); A('v_lshlrev_b32 v224, 4, v222'); A(f'v_add_u32 {vMLg}, {T0}, v224')
        A(f's_lshr_b32 {T0}, {R}, 2'); A(f's_lshl_b32 {T0}, {T0}, 8'); A(f's_and_b32 {T1}, {R}, 3'); A(f's_lshl_b32 {T1}, {T1}, 4'); A(f's_add_u32 {T0}, {T0}, {T1}')
        A(f's_lshr_b32 {T1}, {W}, 1'); A(f's_lshl_b32 {T1}, {T1}, 6'); A(f's_add_u32 {T0}, {T0}, {T1}'); A(f's_and_b32 {T1}, {W}, 1'); A(f's_lshl_b32 {T1}, {T1}, 3'); A(f's_add_u32 {T0}, {T0}, {T1}')
        A('v_lshlrev_b32 v224, 7, v223'); A(f'v_bfe_u32 v225, {L}, 4, 1'); A('v_lshl_add_u32 v224, v225, 2, v224'); A(f'v_add_u32 {vOp}, {T0}, v224')
        A(f'v_lshrrev_b32 v223, 3, {L}'); A(f'v_and_b32 v224, 7, {L}')
        A(f's_lshl_b32 {T0}, {R}, 11'); A(f's_and_b32 {T2}, {W}, 1'); A(f's_lshl_b32 {T1}, {T2}, 10'); A(f's_add_u32 {T0}, {T0}, {T1}')
        A(f's_lshl_b32 {T1}, {G}, 15'); A(f's_add_u32 {T1}, {T1}, {T0}')
        A('v_lshlrev_b32 v226, 7, v223'); A('v_lshl_add_u32 v226, v224, 3, v226'); A(f'v_add_u32 {vCg}, {T1}, v226')
        A(f'v_and_b32 v222, 15, {L}'); A(f'v_lshrrev_b32 v223, 4, {L}'); A('v_lshlrev_b32 v224, 2, v222')
        A(f's_lshl_b32 {T1}, {G}, 7'); A(f's_add_u32 {T1}, {T1}, {T0}'); A('v_lshl_add_u32 v225, v223, 15, v224'); A(f'v_add_u32 {vCp}, {T1}, v225')
        A(f's_lshl_b32 {T0}, {T2}, 9'); A(f's_and_b32 {T1}, {R}, 3'); A(f's_lshl_b32 {T1}, {T1}, 6'); A(f's_add_u32 {T0}, {T0}, {T1}')
        A(f's_lshr_b32 {T1}, {R}, 2'); A(f's_lshl_b32 {T1}, {T1}, 4'); A(f's_add_u32 {T0}, {T0}, {T1}')
        A('v_lshrrev_b32 v224, 3, v222'); A('v_and_b32 v225, 7, v222'); A('v_lshlrev_b32 v224, 8, v224'); A('v_lshl_add_u32 v224, v225, 1, v224'); A(f'v_add_u32 {vPub}, {T0}, v224')
        A(f'v_min_u32 {vGU}, 223, v0'); A(f'v_lshlrev_b32 {vGU}, 1, {vGU}')
        A(f'v_lshlrev_b32 {vHW}, 1, v0'); A(f'v_add_u32 {vHW}, {HX}, {vHW}')
        A('v_and_b32 v224, 3, v222'); A('v_lshlrev_b32 v224, 6, v224'); A('v_lshl_add_u32 v224, v223, 4, v224'); A(f'v_add_u32 {vHR}, {HX}, v224')
        if o.vlate and not o.vafter:
            self.v_issue()
            self.stamp('issued')
        A(f's_waitcnt vmcnt({0 if o.vafter else 8})')
        self.stamp('wq_landed')
        A('s_barrier')
        if o.vafter: self.v_issue()
        lB = self.lab('wB0'); A(f's_cmp_ge_u32 {W}, 2'); A(f's_cbranch_scc1 {lB}')
        self.tile_weights(WA, W_L, 16)
        A('s_branch L_W_S1')
        A(f'{lB}:')
        if not o.kb_early: A('s_barrier')
        self.k_issue(True)
        A('s_branch L_W_FQ')
        A('L_W_NEXT:')
        A(f's_cmp_ge_u32 {W}, 2'); A('s_cbranch_scc1 L_W_Q1')
        self.poll(self.vec_loads(sWS, oX2, XA, True) + [f'buffer_load_ushort {vRES}, {vXu}, {sWS}, {oX2} offen sc1'], lambda: self.chk4(NAT, 220), 'x2', o.sl_x2)
        self.stamp('x_ok')
        A('L_W_S1:')
        self.gemv(XA, WA, True)
        self.ln_fix()
        l1 = self.lab('q1'); A(f's_cmp_lg_u32 {PASS}, 0'); A(f's_cbranch_scc1 {l1}')
        A('v_cvt_pk_bf16_f32 v176, v176, v176'); A(f'v_mov_b32 v177, {TQ}'); A('v_and_b32 v176, 0xffff0000, v176'); A('v_or_b32 v176, v176, v177')
        A(f'v_lshlrev_b32 v178, 1, {vPub}'); A('s_mov_b64 exec, 0xffff')
        A(f'buffer_store_dword v176, v178, {sWS}, {oQ0} offen sc1'); A('s_mov_b64 exec, -1')
        self.stamp('q_pub')
        if not o.kb_early: A('s_barrier')
        self.k_issue(True)
        A('L_W_FQ:')
        self.first_q()
        A('s_branch L_W_S2')
        A(f'{l1}:')
        self.pack_pairs()
        A('s_mov_b64 exec, 0x5555')
        self.pub(f'buffer_store_dword v176, {vPub}, {sWS}, {oQ} offen', FASTA)
        A('s_mov_b64 exec, -1')
        self.stamp('q_pub')
        A('L_W_Q1:')
        self.next_q(o.sl_qw)
        A('L_W_S2:')
        self.stamp('q_ok')
        self.s2()
        self.stamp('rs_pub')
        def chk_rs():
            self.chk_tag([164, 165, 166, 167], 220)
            A(f'v_xor_b32 v221, {TAG32}, v170'); A(f'v_bitop3_b32 v222, v171, {TAG32}, -16 bitop3:0x28'); A('v_or3_b32 v220, v220, v221, v222'); A('v_cmp_ne_u32 vcc, 0, v220')
        self.poll([f'buffer_load_dwordx4 v[164:167], {vRSg}, {sWS}, {oRS} offen sc1', f'buffer_load_dwordx4 v[168:171], {vMLg}, {sWS}, {oML} offen sc1'], chk_rs, 'rs')
        self.stamp('rs_ok')
        l = self.lab('wo0'); A(f's_cmp_lg_u32 {PASS}, 0'); A(f's_cbranch_scc1 {l}')
        A('v_and_b32 v220, 15, v171'); A(f'v_cmp_ne_u32 vcc, {XCC}, v220'); A('s_cmp_eq_u64 vcc, 0'); A(f's_cselect_b32 {FASTA}, 1, 0')
        if o.force_slow: A(f's_mov_b32 {FASTA}, 0')
        self.slice_src('v235', 1024)
        A(f's_lshl_b32 {T0}, {G}, 19'); A(f's_lshl_b32 {T1}, {W}, 17'); A(f's_add_u32 {T0}, {T0}, {T1}'); A(f's_lshl_b32 {T1}, {R}, 6'); A(f's_add_u32 {T0}, {T0}, {T1}')
        A(f's_lshl_b32 {T1}, {W}, 13'); A(f's_add_u32 {T1}, {T1}, {W_L}')
        self.dma_slices(sWO, 'v235', T0, 8, 16 * 1024, T1)
        A(f'{l}:')
        M, TT, Wt, Lr = 172, 173, 174, 175
        A(f'v_max_f32_dpp v{M}, v168, v168 row_ror:1 row_mask:0xf bank_mask:0xf')
        self.strip_tag(164); self.strip_tag(165)
        self.dpp('v_max_f32', M, 2)
        self.strip_tag(166); self.strip_tag(167)
        self.dpp('v_max_f32', M, 4); self.dpp('v_max_f32', M, 8)
        self.swap_red('v_max_f32', M, TT, 16)
        A(f'v_sub_f32 v{Wt}, v168, v{M}'); A(f'v_exp_f32 v{Wt}, v{Wt}')
        for k in range(4): A(f'v_mul_f32 v{164+k}, v{Wt}, v{164+k}')
        A(f'v_mul_f32 v{Lr}, v{Wt}, v169')
        A('v_permlane16_swap_b32 v164, v166'); A('v_permlane16_swap_b32 v165, v167')
        A(f'v_mov_b32 v{TT}, v{Lr}'); A('v_add_f32 v164, v164, v166'); A('v_add_f32 v165, v165, v167')
        A(f'v_permlane16_swap_b32 v{Lr}, v{TT}'); A(f'v_add_f32 v{Lr}, v{Lr}, v{TT}')
        for ror in (8, 4, 2, 1):
            self.dpp('v_add_f32', Lr, ror); self.dpp('v_add_f32', 164, ror); self.dpp('v_add_f32', 165, ror)
        A(f'v_rcp_f32 v{Lr}, v{Lr}'); A(f'v_mul_f32 v164, v{Lr}, v164'); A(f'v_mul_f32 v165, v{Lr}, v165')
        A('v_cvt_pk_bf16_f32 v164, v164, v165')
        A('s_mov_b32 exec_lo, 0x00010001'); A('s_mov_b32 exec_hi, 0x00010001')
        self.pub(f'buffer_store_dword v164, {vOp}, {sWS}, {oO} offen')
        A('s_mov_b64 exec, -1')
        self.stamp('o_pub')
        l = self.lab('wo1'); A(f's_cmp_lg_u32 {PASS}, 0'); A(f's_cbranch_scc1 {l}')
        A('s_waitcnt vmcnt(0)'); A('s_barrier')
        self.stamp('wo_landed')
        A(f's_cmp_ge_u32 {W}, 2'); A(f's_cbranch_scc1 {l}')
        self.tile_weights(WB, W_L, 16)
        A(f'{l}:')
        l5 = self.lab('w_b5'); A(f's_cmp_ge_u32 {W}, 2'); A(f's_cbranch_scc1 {l5}')
        self.poll(self.vec_loads(sWS, oO, OA, False, nat=False), lambda: self.chk16(OA, 220), 'o')
        self.stamp('o_ok')
        self.gemv(OA, WB, False)
        self.cross_pub(oC1, False)
        self.stamp('c1_pub')
        self.cross_reduce(oC1, vRES, o.d1, 'c1')
        A('s_mov_b64 exec, 0xff')
        self.pub(f'buffer_store_dword v164, {vXp}, {sWS}, {oX1} offen', FASTA)
        A('s_mov_b64 exec, -1')
        self.stamp('x1_pub')
        A(f'{l5}:')
        A('s_barrier')
        l = self.lab('now2'); A(f's_cmp_lg_u32 {PASS}, 0'); A(f's_cbranch_scc1 {l}')
        self.w2_issue()
        A('s_waitcnt vmcnt(0)'); A('s_barrier')
        self.stamp('w2_landed')
        A(f's_cmp_ge_u32 {W}, 2'); A(f's_cbranch_scc1 {l}')
        self.tile_weights(W2F, W2_L, 7)
        A(f'{l}:')
        self.poll([f'buffer_load_ushort v164, {vGU}, {sWS}, {oGU} offen sc1', f'buffer_load_ushort v165, {vGU}, {sWS}, {oGU} offen offset:512 sc1',
                   f'buffer_load_ushort {vRES8}, {vXu}, {sWS}, {oX1} offen sc1'],
                  lambda: (A(f'v_max3_u32 v166, v164, v165, {vRES8}'), A('v_cmp_eq_u32 vcc, 0xffff, v166')), 'gu', o.sl_gu)
        self.stamp('gu_ok')
        A('v_lshlrev_b32 v164, 16, v164'); A('v_lshlrev_b32 v165, 16, v165')
        A('v_mul_f32 v166, 0xbfb8aa3b, v164'); A('v_mul_f32 v164, v164, v165'); A('v_exp_f32 v166, v166'); A('v_add_f32 v166, 1.0, v166'); A('v_rcp_f32 v166, v166')
        A('v_mul_f32 v164, v164, v166'); A('v_cvt_pk_bf16_f32 v164, v164, v164')
        A(f'ds_write_b16 {vHW}, v164'); A('s_waitcnt lgkmcnt(0)'); A('s_barrier')
        A(f's_cmp_ge_u32 {W}, 2'); A('s_cbranch_scc1 L_W_TAIL')
        A(f'ds_read_b128 {v(164,4)}, {vHR}'); A(f'ds_read_b128 {v(168,4)}, {vHR} offset:256'); A('s_waitcnt lgkmcnt(0)')
        for r in range(4): A(f'v_mfma_f32_16x16x32_bf16 {v(ACC+4*r,4)}, {v(164,4)}, {ag(W2F+4*r)}, 0')
        for r in range(3): A(f'v_mfma_f32_16x16x32_bf16 {v(ACC+4*r,4)}, {v(168,4)}, {ag(W2F+16+4*r)}, {v(ACC+4*r,4)}')
        A(f'v_add_f32 v176, v{ACC+15}, v{ACC}'); A(f'v_add_f32 v177, v{ACC+5}, v{ACC+10}'); A('v_add_f32 v176, v176, v177')
        self.cross_pub(oC2, True)
        self.stamp('c2_pub')
        self.cross_reduce(oC2, vRES8, o.d2, 'c2')
        A('s_mov_b64 exec, 0xff')
        lo = self.lab('out'); A(f's_cmp_lg_u32 {PASS}, 0'); A(f's_cbranch_scc1 {lo}')
        self.pub(f'buffer_store_dword v164, {vXp}, {sWS}, {oX2} offen')
        A('s_mov_b64 exec, -1')
        self.stamp('x2_pub')
        A('L_W_TAIL:')
        A(f's_cmp_lg_u32 {PASS}, 0'); A('s_cbranch_scc1 L_W_END')
        self.next_pass()
        A('s_branch L_W_NEXT')
        A(f'{lo}:')
        A(f'buffer_store_dword v164, {vXo}, {sOUT}, 0 offen')
        A(f's_or_b32 {T0}, {R}, {W}'); A(f's_cmp_lg_u32 {T0}, 0'); A('s_cbranch_scc1 L_W_END1')
        A(f'v_mov_b32 v168, {TAG32}'); A(f'v_mov_b32 v169, {OFF_EPOCH}'); A('s_mov_b64 exec, 1')
        A(f'buffer_store_dword v168, v169, {sWS}, 0 offen')
        A('L_W_END1:')
        A('s_mov_b64 exec, -1')
        self.stamp('x2_pub')
        A('L_W_END:')
        self.end()
        self.flush_tail()

    def build_f(self):
        A = self; o = self.o
        A('L_F:')
        self.qpre(8 if o.fqpre else 4)
        self.code_prefetch('L_F', 'L_bail', 1)
        if o.fwait: A('s_waitcnt vmcnt(0)')
        if o.fpre2:
            self.pretouch_early(); A('s_waitcnt vmcnt(0)')
        if o.fsleep: A(f's_sleep {o.fsleep}')
        self.v_issue()
        self.k_issue(False)
        if not o.fpre2: self.pretouch_early()
        self.stamp('issued')
        self.common_addr()
        self.set_ones()
        A(f'v_and_b32 v222, 15, {L}'); A('v_lshlrev_b32 v224, 1, v222')
        A(f's_and_b32 {T0}, {R}, 1'); A(f's_lshl_b32 {T0}, {T0}, 9'); A(f's_lshr_b32 {T1}, {R}, 1'); A(f's_lshl_b32 {T1}, {T1}, 6'); A(f's_add_u32 {T0}, {T0}, {T1}')
        A(f's_and_b32 {T1}, {W}, 1'); A(f's_lshl_b32 {T1}, {T1}, 5'); A(f's_add_u32 {T0}, {T0}, {T1}')
        A(f'v_add_u32 {vPub}, {T0}, v224')
        self.first_q(0 if o.fpre2 else 3)
        self.wo_prefetch()
        A('s_branch L_F_S2')
        A('L_F_NEXT:')
        self.next_q(o.sl_q)
        A('L_F_S2:')
        self.stamp('q_ok')
        self.s2()
        self.stamp('rs_pub')
        l = self.lab('nolate'); A(f's_cmp_lg_u32 {PASS}, 0'); A(f's_cbranch_scc1 {l}')
        self.pretouch_late()
        A(f'{l}:')
        lsp = self.lab('spare'); A(f's_cmp_ge_u32 {R}, 14'); A(f's_cbranch_scc1 {lsp}')
        l = self.lab('late'); A(f's_cmp_lg_u32 {PASS}, 0'); A(f's_cbranch_scc1 {l}')
        A(f's_and_b32 {T0}, {R}, 1'); A(f's_cmp_eq_u32 {T0}, 0')
        A('s_cselect_b32 s84, s60, s64'); A('s_cselect_b32 s85, s61, s65'); A('s_mov_b32 s86, 1835008'); A('s_mov_b32 s87, 0x20000')
        self.slice_src('v235', 3584)
        A(f's_mul_i32 {T0}, {W}, {128*3584}'); A(f's_mul_i32 {T1}, {G}, 448'); A(f's_add_u32 {T0}, {T0}, {T1}')
        A(f's_lshr_b32 {T1}, {R}, 1'); A(f's_lshl_b32 {T1}, {T1}, 6'); A(f's_add_u32 {T0}, {T0}, {T1}')
        A(f's_lshl_b32 {T1}, {W}, 13'); A(f's_add_u32 {T1}, {T1}, {W_L}')
        self.dma_slices(sWF, 'v235', T0, 8, 16 * 3584, T1)
        A('s_waitcnt vmcnt(0)'); A('s_barrier')
        self.stamp('f1_landed')
        A(f's_cmp_ge_u32 {W}, 2'); A('s_cbranch_scc1 L_F_TAIL')
        self.tile_weights(WA, W_L, 16)
        A(f'{l}:')
        A(f's_cmp_ge_u32 {W}, 2'); A('s_cbranch_scc1 L_F_TAIL')
        self.poll(self.vec_loads(sWS, oX1, XA, True), lambda: self.chk4(NAT, 220), 'x1', o.sl_x1)
        self.stamp('x1_ok')
        self.gemv(XA, WA, True)
        self.ln_fix()
        self.pack_pairs()
        A('s_mov_b64 exec, 0x5555')
        self.pub(f'buffer_store_dword v176, {vPub}, {sWS}, {oGU} offen')
        A('s_mov_b64 exec, -1')
        self.stamp('gu_pub')
        A('L_F_TAIL:')
        A(f's_cmp_lg_u32 {PASS}, 0'); A('s_cbranch_scc1 L_F_END')
        self.next_pass()
        A('s_branch L_F_NEXT')
        A(f'{lsp}:')
        A(f's_cmp_lg_u32 {PASS}, 0'); A('s_cbranch_scc1 L_F_END')
        A(f's_sub_u32 {T1}, {R}, 14'); A(f's_lshl_b32 {T1}, {T1}, 2'); A(f's_add_u32 {T1}, {T1}, {W}'); A(f's_mul_i32 {T1}, {T1}, 28672')
        A(f's_mul_i32 {T0}, {G}, {224*1024}'); A(f's_add_u32 {T0}, {T0}, {T1}'); A(f's_mov_b32 m0, {DUM_L}'); A(f's_mov_b32 {T2}, 0')
        lw = self.lab('w2pre'); A(f'{lw}:')
        for k in range(4):
            A(f'buffer_load_dwordx4 {vLin}, {sW2}, {T0} offen lds'); A(f's_add_u32 {T0}, {T0}, 1024')
        A(f's_add_u32 {T2}, {T2}, 1'); A(f's_cmp_lt_u32 {T2}, 7'); A(f's_cbranch_scc1 {lw}')
        A('s_branch L_F_TAIL')
        A('L_F_END:')
        self.end()
        self.flush_tail()

def emit(opt):
    k = K(opt); k.build()
    body = k.a.finalize()
    head = open('cdna_kernels/' + NAME + '.s.ref').read().split('; Override launch')[0]
    txt = head + f"""; Override launch geometry by editing the next line. Harness parses it; keep it on one line.
; @launch grid=(256,1,1) block=(256,1,1) lds={LDS_SIZE}
.amdgcn_target "amdgcn-amd-amdhsa--gfx950"
.text
.globl {NAME}_kernel
.p2align 8
.type {NAME}_kernel,@function
{NAME}_kernel:
{body}
.section .rodata,"a"
.p2align 6
.amdhsa_kernel {NAME}_kernel
  .amdhsa_next_free_vgpr 416
  .amdhsa_next_free_sgpr 102
  .amdhsa_accum_offset 256
  .amdhsa_group_segment_fixed_size 0
  .amdhsa_kernarg_size 96
  .amdhsa_user_sgpr_count 2
  .amdhsa_user_sgpr_kernarg_segment_ptr 1
  .amdhsa_system_sgpr_workgroup_id_x 1
  .amdhsa_float_denorm_mode_32 3
.end_amdhsa_kernel
"""
    return txt, k

def options(argv=None):
    p = argparse.ArgumentParser()
    p.add_argument('-o', default='cdna_kernels/' + NAME + '.s')
    p.add_argument('--stamps', action='store_true'); p.add_argument('--stamp-only', default=''); p.add_argument('--no-nt', dest='nt', action='store_false')
    p.add_argument('--no-codepf', dest='codepf', action='store_false'); p.add_argument('--no-pre-cross', dest='pre_cross', action='store_false')
    p.add_argument('--kb-early', action='store_true'); p.add_argument('--fqpre', action='store_true'); p.add_argument('--vlate', action='store_true'); p.add_argument('--waitq', action='store_true'); p.add_argument('--fwait', action='store_true'); p.add_argument('--fpre2', action='store_true'); p.add_argument('--fsleep', type=int, default=0); p.add_argument('--vafter', action='store_true')
    p.add_argument('--spin', type=int, default=0); p.add_argument('--probe', default=''); p.add_argument('--probe-pass', type=int, default=0)
    p.add_argument('--force-slow', action='store_true'); p.add_argument('--d1', type=int, default=128); p.add_argument('--d2', type=int, default=128)
    for n, d in (('x2', 0), ('gu', 0), ('q', 0), ('qw', 0), ('x1', 0), ('q0', 2)): p.add_argument('--sl-' + n, dest='sl_' + n, type=int, default=d)
    return p.parse_args(argv)

if __name__ == '__main__':
    opt = options()
    txt, k = emit(opt)
    open(opt.o, 'w').write(txt)
    print('wrote', opt.o, 'instr', len(k.a.ins), 'nops inserted', k.a.inserted, 'stamps', k.stamp_names)
```
